```python
import torch

def _softmax(x, axis=-1):
    return torch.softmax(x, dim=axis)
def _gelu(x):
    return torch.nn.functional.gelu(x, approximate="tanh")
def _silu(x):
    return torch.nn.functional.silu(x)
def _sigmoid(x):
    return torch.sigmoid(x)
def _layernorm(x, axis=-1, eps=1e-5):
    m = x.mean(dim=axis, keepdim=True)
    v = x.var(dim=axis, keepdim=True, unbiased=False)
    return (x - m) / torch.sqrt(v + eps)
def _scatter_add(tgt, idx, src, axis=0):
    return tgt.clone().index_add_(axis, idx, src)
def _segment_sum(src, seg, n):
    out = torch.zeros((n,) + src.shape[1:], dtype=src.dtype)
    return out.index_add_(0, seg, src)
def _pad(x, pw):
    flat = tuple(v for pair in reversed(pw) for v in pair)
    return torch.nn.functional.pad(x, flat)

kernel_name = 'concat_heads__grouped_kv_mqa__compressed_kv_cla__prompt'

def setup_inputs():

    _w = (lambda a: (lambda t: t.to(torch.bfloat16) if t.is_floating_point() else t)(torch.as_tensor(a)))
    def _A_setup():
        B, S, D, H = 1, 2048, 576, 32
        Dh = D // H
        return {
            "x": _w((lambda *s: torch.randn(*s, dtype=torch.bfloat16) * 0.05)(B, S, D)),
            "wq": _w((lambda *s: torch.randn(*s, dtype=torch.bfloat16) * 0.8)(D, H * Dh)),
            "wk": _w((lambda *s: torch.randn(*s, dtype=torch.bfloat16) * 0.8)(D, Dh)),
            "wv": _w((lambda *s: torch.randn(*s, dtype=torch.bfloat16) * 0.05)(D, Dh)),
            "wo": _w((lambda *s: torch.randn(*s, dtype=torch.bfloat16) * 0.05)(H * Dh, D)),
        }
    _A_in = _A_setup()

    def _B_setup():
        B, H, Sq, Sk, D, M = 1, 32, 2048, 2048, 128, 576
        Dc = 4 * D
        return {
            "x": _w((lambda *s: torch.randn(*s, dtype=torch.bfloat16) * 3.2)(B, Sq, M)),
            "c_kv": _w((lambda *s: torch.randn(*s, dtype=torch.bfloat16) * 0.1)(B, Sk, Dc)),
            "w_q": _w((lambda *s: torch.randn(*s, dtype=torch.bfloat16) * 6.4)(M, H, D) * (M ** -0.5)),
            "w_uk": _w((lambda *s: torch.randn(*s, dtype=torch.bfloat16) * 6.4)(Dc, H, D) * (Dc ** -0.5)),
            "w_uv": _w((lambda *s: torch.randn(*s, dtype=torch.bfloat16) * 0.1)(Dc, H, D) * (Dc ** -0.5)),
            "w_o": _w((lambda *s: torch.randn(*s, dtype=torch.bfloat16) * 0.1)(H, D, M) * ((H * D) ** -0.5)),
        }
    _B_in = _B_setup()

    return {
        "A_x": _A_in["x"],
        "A_wq": _A_in["wq"],
        "A_wk": _A_in["wk"],
        "A_wv": _A_in["wv"],
        "A_wo": _A_in["wo"],
        "B_x": _B_in["x"],
        "B_c_kv": _B_in["c_kv"],
        "B_w_q": _B_in["w_q"],
        "B_w_uk": _B_in["w_uk"],
        "B_w_uv": _B_in["w_uv"],
        "B_w_o": _B_in["w_o"],
    }

def reference(A_x, A_wq, A_wk, A_wv, A_wo, B_x, B_c_kv, B_w_q, B_w_uk, B_w_uv, B_w_o):
    def _A_ref(x, wq, wk, wv, wo):
        B, S, D = x.shape
        H = 32
        Dh = D // H
        q = (lambda x, *d: x.permute(*d))((x @ wq).reshape(B, S, H, Dh), 0, 2, 1, 3)
        k = x @ wk
        v = x @ wv
        scores = torch.einsum("bhqd,bkd->bhqk", q, k) * (Dh ** -0.5)
        p = _softmax(scores, axis=-1)
        o = torch.einsum("bhqk,bkd->bhqd", p, v)
        return (lambda x, *d: x.permute(*d))(o, 0, 2, 1, 3).reshape(B, S, H * Dh) @ wo

    def _B_ref(x, c_kv, w_q, w_uk, w_uv, w_o):
        B, Sq, M = x.shape[0], x.shape[1], x.shape[2]
        Sk = c_kv.shape[1]
        H, D = w_q.shape[1], w_q.shape[2]
        q = torch.einsum("bqm,mhd->bhqd", x, w_q)
        k = torch.einsum("bkc,chd->bhkd", c_kv, w_uk)
        v = torch.einsum("bkc,chd->bhkd", c_kv, w_uv)
        scores = torch.einsum("bhqd,bhkd->bhqk", q, k) * (D ** -0.5)
        off = Sk - Sq
        qi = torch.arange(Sq)[:, None]
        kj = torch.arange(Sk)[None, :]
        cmask = kj <= (qi + off)
        scores = torch.where(cmask[None, None], scores, -1e9)
        p = _softmax(scores, axis=-1)
        ctx = torch.einsum("bhqk,bhkd->bhqd", p, v)
        return torch.einsum("bhqd,hdm->bqm", ctx, w_o)

    a = _A_ref(A_x, A_wq, A_wk, A_wv, A_wo)
    b = _B_ref(B_x, B_c_kv, B_w_q, B_w_uk, B_w_uv, B_w_o)
    return torch.concatenate([a, b], axis=-1)
```

```python
from gen import *
import gen

NEG_BIG = 0xff7fffff
import os
ABL = os.environ.get('ABL', '')

def phase_attnB(a, s_task):
    sX, sWQ, sWS = SRD0, SRD1, SRD3
    make_srd(a, sX, P_BX, 2048 * 576 * 2)
    make_srd(a, sWQ, P_BWQ, 576 * 4096 * 2)
    make_srd(a, sWS, P_WS, WS_BYTES)
    sW = S_WAVE
    (sHead, sI, sT0, sT1, sAoff, sWoff, sM0a, sM0w, sUd, sNT, sN, sU, sKoff, sVoff, sRing, sClamp, sQb, sThr, sPrev, sNS, sE1, sE2) = [S_T + i for i in range(22)]
    a(f"s_and_b32 s{sHead}, s{s_task}, 31")
    a(f"s_lshr_b32 s{sI}, s{s_task}, 5")
    a(f"s_lshl_b32 s{sT0}, s{sI}, 2")
    a(f"s_add_u32 s{sT1}, s{sT0}, s{sW}")
    a(f"s_sub_u32 s{sQb}, 67, s{sT1}")
    a(f"s_cmp_lt_u32 s{sW}, 4")
    a(f"s_cselect_b32 s{sQb}, s{sT1}, s{sQb}")
    a(f"s_mov_b32 s{sUd}, s{sQb}")
    a(f"s_lshl_b32 s{sT0}, s{sI}, 1")
    a(f"s_sub_u32 s{sNT}, 32, s{sT0}")
    vL16, vCur, vNxt = 2, 3, 4
    vT = 5
    vL, vTs, vTmp = 8, 9, 10
    vE = 11
    vTq = 15
    vQ, vO, vS0, vS1, vP0, vP1, vN, vNM, FR = 16, 48, 112, 128, 144, 152, 160, 176, 192
    vA0, vA1, vW, vRA, vRW = 232, 233, 234, 236, 240
    F0, F1 = 192, 212
    vX = 244
    a(f"v_lshlrev_b32 v{vL16}, 4, v1")
    a(f"v_lshrrev_b32 v{vX}, 3, v1")
    a(f"s_lshl_b32 s{sT0}, s{sQb}, 5")
    a(f"v_add_u32 v{vX}, s{sT0}, v{vX}")
    a(f"s_movk_i32 s{sT0}, 1152")
    a(f"v_mul_lo_u32 v{vX}, v{vX}, s{sT0}")
    a(f"v_lshrrev_b32 v{vX + 1}, 4, v1")
    a(f"v_and_b32 v{vX + 2}, 7, v1")
    a(f"v_xor_b32 v{vX + 3}, v{vX + 2}, v{vX + 1}")
    a(f"v_lshl_add_u32 v{vA0}, v{vX + 3}, 4, v{vX}")
    a(f"v_xor_b32 v{vX + 3}, 4, v{vX + 3}")
    a(f"v_lshl_add_u32 v{vA1}, v{vX + 3}, 4, v{vX}")
    a(f"v_add_u32 v{vA1}, {8 * 1152}, v{vA1}")
    a(f"v_and_b32 v{vX + 2}, 15, v1")
    a(f"v_lshlrev_b32 v{vX + 3}, 2, v{vX + 1}")
    a(f"v_xor_b32 v{vX + 2}, v{vX + 2}, v{vX + 3}")
    a(f"v_lshlrev_b32 v{vX + 2}, 4, v{vX + 2}")
    a(f"v_lshl_add_u32 v{vW}, v{vX + 1}, 13, v{vX + 2}")
    a(f"s_lshl_b32 s{sT0}, s{sHead}, 8")
    a(f"v_add_u32 v{vW}, s{sT0}, v{vW}")
    a(f"v_and_b32 v{vX}, 31, v1")
    a(f"s_lshl_b32 s{sT0}, s{sW}, 5")
    a(f"v_add_u32 v{vX + 1}, s{sT0}, v{vX}")
    a(f"v_lshlrev_b32 v{vX + 1}, 7, v{vX + 1}")
    a(f"v_bfe_u32 v{vX + 2}, v1, 1, 3")
    a(f"v_lshrrev_b32 v{vX + 3}, 5, v1")
    for t in range(4):
        a(f"v_add_u32 v{vX + 4}, {2 * t}, v{vX + 3}")
        a(f"v_xor_b32 v{vX + 4}, v{vX + 4}, v{vX + 2}")
        a(f"v_lshl_add_u32 v{vRA + t}, v{vX + 4}, 4, v{vX + 1}")
    a(f"v_bfe_u32 v{vX}, v1, 2, 2")
    a(f"v_lshrrev_b32 v{vX + 1}, 5, v1")
    a(f"v_lshl_add_u32 v{vX + 1}, v{vX + 1}, 3, v{vX}")
    a(f"v_lshlrev_b32 v{vX + 1}, 8, v{vX + 1}")
    a(f"v_bfe_u32 v{vX + 2}, v1, 4, 1")
    a(f"v_bfe_u32 v{vX + 3}, v1, 1, 1")
    a(f"v_lshl_add_u32 v{vX + 2}, v{vX + 2}, 1, v{vX + 3}")
    a(f"v_lshl_add_u32 v{vX + 1}, v{vX + 2}, 4, v{vX + 1}")
    a(f"v_and_b32 v{vX + 2}, 1, v1")
    a(f"v_lshl_add_u32 v{vX + 1}, v{vX + 2}, 3, v{vX + 1}")
    a(f"v_add_u32 v{vX + 1}, 32768, v{vX + 1}")
    for c in range(4):
        a(f"v_xor_b32 v{vX + 2}, {c}, v{vX}")
        a(f"v_lshl_add_u32 v{vRW + c}, v{vX + 2}, 6, v{vX + 1}")
    a(f"s_lshl_b32 s{sM0a}, s{sW}, 12")
    a(f"s_lshl_b32 s{sM0w}, s{sW}, 11")
    a(f"s_add_u32 s{sM0w}, s{sM0w}, 32768")
    a(f"s_lshl_b32 s{sWoff}, s{sW}, 16")
    a(f"s_mov_b32 s{sAoff}, 0")
    a(f"s_lshl_b32 s{sKoff}, s{sHead}, 19")
    a(f"s_add_u32 s{sVoff}, s{sKoff}, {WS_VF - 16384}")
    if WS_KF:
        a(f"s_add_u32 s{sKoff}, s{sKoff}, {WS_KF}")
    a(f"s_lshl_b32 s{sNS}, s{sI}, 1")
    a(f"s_add_u32 s{sNS}, s{sNS}, 3")
    a(f"s_mov_b32 s{sRing}, 0")

    QSTAGE = 49152
    def q_dma(buf):
        b = buf * QSTAGE
        for j in range(4):
            a(f"s_add_u32 m0, s{sM0a}, {b + j * 1024}")
            if j >= 2:
                a(f"s_add_u32 s{sT0}, s{sAoff}, {16 * 1152}")
                so = sT0
            else:
                a("s_nop 0")
                so = sAoff
            a(f"buffer_load_dwordx4 v{vA0 + (j & 1)}, {sr(sX, 4)}, s{so} offen lds")
        for j in range(2):
            a(f"s_add_u32 s{sT0}, s{sWoff}, {j * 32768}")
            a(f"s_add_u32 m0, s{sM0w}, {b + j * 1024}")
            a("s_nop 0")
            a(f"buffer_load_dwordx4 v{vW}, {sr(sWQ, 4)}, s{sT0} offen lds")
        a(f"s_add_u32 s{sAoff}, s{sAoff}, 128")
        a(f"s_add_u32 s{sWoff}, s{sWoff}, 524288")

    def kv_dma(wide):
        sh = 12 if wide else 11
        n = 4 if wide else 2
        a(f"s_lshl_b32 s{sT1}, s{sW}, {sh}")
        a(f"s_add_u32 m0, s{sRing}, s{sT1}")
        a(f"s_add_u32 s{sT0}, s{sKoff}, s{sT1}")
        for j in range(n):
            a(f"buffer_load_dwordx4 v{vL16}, {sr(sWS, 4)}, s{sT0} offen offset:{j * 1024} lds")
        a(f"s_add_u32 s{sT0}, s{sRing}, s{sT1}")
        a(f"s_add_u32 m0, s{sT0}, 16384")
        a(f"s_add_u32 s{sT0}, s{sVoff}, s{sT1}")
        for j in range(n):
            a(f"buffer_load_dwordx4 v{vL16}, {sr(sWS, 4)}, s{sT0} offen offset:{j * 1024} lds")

    def kv_advance():
        a(f"s_add_u32 s{sKoff}, s{sKoff}, 16384")
        a(f"s_add_u32 s{sVoff}, s{sVoff}, 16384")
        a(f"s_add_u32 s{sRing}, s{sRing}, 32768")
        a(f"s_and_b32 s{sRing}, s{sRing}, 0x1ffff")

    def q_reads(F, t, buf):
        b = buf * QSTAGE
        a(f"ds_read_b128 {vr(F, 4)}, v{vRA + t}")
        for c in range(4):
            for j in range(2):
                a(f"ds_read_b64_tr_b16 {vr(F + 4 + 4 * c + 2 * j, 2)}, v{vRW + c} offset:{(16 * t + 4 * j) * 256}")

    def q_shift(delta):
        for t in range(4):
            a(f"v_add_u32 v{vRA + t}, {delta & 0xffffffff:#x}, v{vRA + t}")
        for c in range(4):
            a(f"v_add_u32 v{vRW + c}, {delta & 0xffffffff:#x}, v{vRW + c}")

    def q_mfmas(F, first):
        for c in range(4):
            mfma(a, vO + 16 * c, F + 4 + 4 * c, F, "0" if first else None)

    stamp(a, 0)
    stamp(a, 5, True)
    NQ = 9
    outstanding = []
    def issue(tag, n): outstanding.append((tag, n))
    def wait_for(tag):
        idx = [i for i, (t, n) in enumerate(outstanding) if t == tag][0]
        rest = sum(n for (t, n) in outstanding[idx + 1:])
        del outstanding[:idx + 1]
        return rest
    for s in range(3):
        q_dma(s); issue(("q", s), 6)
    a(f"s_waitcnt vmcnt({wait_for(('q', 0))})")
    a("s_barrier")
    q_reads(F0, 0, 0)
    for s in range(NQ):
        q_reads(F1, 1, s % 3)
        a("s_waitcnt lgkmcnt(9)")
        q_mfmas(F0, s == 0)
        q_reads(F0, 2, s % 3)
        a("s_waitcnt lgkmcnt(9)")
        q_mfmas(F1, False)
        q_reads(F1, 3, s % 3)
        a("s_waitcnt lgkmcnt(9)")
        q_mfmas(F0, False)
        if s < NQ - 1:
            a(f"s_waitcnt vmcnt({wait_for(('q', s + 1))}) lgkmcnt(0)")
            a("s_barrier")
            if s + 3 < NQ:
                q_dma(s % 3); issue(("q", s + 3), 6)
            elif s == NQ - 3:
                kv_dma(False); kv_advance(); issue(("kv", 0), 4)
            elif s == NQ - 2:
                kv_dma(False); kv_advance(); issue(("kv", 1), 4)
                kv_dma(False); kv_advance(); issue(("kv", 2), 4)
            q_shift(QSTAGE if (s % 3) < 2 else -2 * QSTAGE)
            q_reads(F0, 0, (s + 1) % 3)
        else:
            a("s_waitcnt lgkmcnt(0)")
        q_mfmas(F1, False)
    a(f"s_mov_b32 s{sT0}, {f32bits(C_B):#x}")
    a("s_nop 7")
    a("s_nop 7")
    for i in range(64):
        a(f"v_mul_f32 v{vO + i}, s{sT0}, v{vO + i}")
    for i in range(32):
        a(f"v_cvt_pk_bf16_f32 v{vQ + i}, v{vO + 2 * i}, v{vO + 2 * i + 1}")
    for i in range(64):
        a(f"v_mov_b32 v{vO + i}, 0")
    for i in range(16):
        a(f"v_mov_b32 v{vN + i}, 0")
    a(f"v_mov_b32 v{vL}, 0")
    for i in range(16):
        a(f"v_mov_b32 v{vS1 + i}, {NEG_BIG:#x}")
    for i in range(8):
        a(f"v_mov_b32 v{vP0 + i}, 0")
    a(f"v_and_b32 v{vTq}, 31, v1")
    a(f"v_lshrrev_b32 v{vT}, 5, v1")
    a(f"v_lshlrev_b32 v{vT}, 2, v{vT}")
    a(f"v_sub_u32 v{vTq}, v{vTq}, v{vT}")
    a(f"v_mov_b32 v{vCur}, v{vL16}")
    a(f"v_add_u32 v{vNxt}, 32768, v{vL16}")
    a(f"s_waitcnt vmcnt({wait_for(('kv', 0))})")
    a("s_barrier")
    stamp(a, 1)
    a(f"s_mov_b32 s{sN}, 0")

    SEQ = [('Q', 0), ('Q', 1), ('P', 0, 0), ('Q', 2), ('P', 1, 0), ('Q', 3), ('P', 2, 0), ('Q', 4), ('P', 3, 0), ('Q', 5),
           ('P', 0, 1), ('Q', 6), ('Q', 7), ('P', 1, 1), ('P', 2, 1), ('P', 3, 1)]
    D = 6

    def frag_read(par, k, nxt):
        e = SEQ[k]
        off = (par * 8192 + e[1] * 1024) if e[0] == 'Q' else (16384 + par * 8192 + (e[1] * 2 + e[2]) * 1024)
        a(f"ds_read_b128 {vr(FR + 4 * (k % 8), 4)}, v{vNxt if nxt else vCur} offset:{off}")

    def prefetch_next(par):
        for k in range(D):
            frag_read(1 - par, k, par == 1)

    def sync_dma():
        l4, l8, lb = a.newlabel("W"), a.newlabel("W"), a.newlabel("W")
        a(f"s_cmp_eq_u32 s{sPrev}, 4")
        a(f"s_cbranch_scc1 {l4}")
        a(f"s_cmp_eq_u32 s{sPrev}, 8")
        a(f"s_cbranch_scc1 {l8}")
        a("s_waitcnt vmcnt(0)")
        a.label(l4)
        a("s_waitcnt vmcnt(4)")
        a.label(l8)
        a("s_waitcnt vmcnt(8)")
        a("s_barrier")
        l2, lw = a.newlabel("W"), a.newlabel("W")
        a(f"s_mov_b32 s{sPrev}, 0")
        a(f"s_add_u32 s{sT0}, s{sN}, 3")
        a(f"s_cmp_gt_u32 s{sT0}, s{sNT}")
        a(f"s_cbranch_scc1 {l2}")
        a(f"s_cmp_ge_u32 s{sN}, s{sNS}")
        a(f"s_cbranch_scc1 {lw}")
        if 'nodma' not in ABL: kv_dma(False)
        a(f"s_mov_b32 s{sPrev}, 4")
        a(f"s_branch {lb}")
        a.label(lw)
        a(f"s_cmp_ge_u32 s{sW}, 4")
        a(f"s_cbranch_scc1 {lb}")
        if 'nodma' not in ABL: kv_dma(True)
        a(f"s_mov_b32 s{sPrev}, 8")
        a.label(lb)
        kv_advance()
        a.label(l2)

    def regs(par):
        if par == 0:
            return dict(Sn=vS0, Sc=vS1, Pc=vP1, Pp=vP0)
        return dict(Sn=vS1, Sc=vS0, Pc=vP0, Pp=vP1)

    def sm_plain(R):
        for p in range(8):
            e = vE + 2 * (p & 1)
            a(f"v_exp_f32 v{e}, v{R['Sc'] + 2 * p}")
            a(f"v_exp_f32 v{e + 1}, v{R['Sc'] + 2 * p + 1}")
            a("s_nop 0")
            if p == 0:
                a(f"v_add_f32 v{vTs}, v{e}, v{e + 1}")
            else:
                a(f"v_add_f32 v{vTmp}, v{e}, v{e + 1}")
                a(f"v_add_f32 v{vTs}, v{vTs}, v{vTmp}")
            a(f"v_cvt_pk_bf16_f32 v{R['Pc'] + p}, v{e}, v{e + 1}")

    def slow_path(R, lab, back):
        a.label(lab)
        a("s_nop 15")
        Sc, Sn = R['Sc'], R['Sn']
        a(f"v_max3_f32 v{vT}, v{Sc}, v{Sc + 1}, v{Sc + 2}")
        for i in range(3, 15, 2):
            a(f"v_max3_f32 v{vT}, v{vT}, v{Sc + i}, v{Sc + i + 1}")
        a(f"v_max_f32 v{vT}, v{vT}, v{Sc + 15}")
        a(f"v_mov_b32 v{vT + 1}, v{vT}")
        a("s_nop 1")
        a(f"v_permlane32_swap_b32 v{vT}, v{vT + 1}")
        a("s_nop 1")
        a(f"v_max_f32 v{vT}, v{vT}, v{vT + 1}")
        a(f"v_add_f32 v{vT}, {f32bits(T_OFF):#x}, v{vT}")
        a(f"v_max_f32 v{vT}, s{sClamp}, v{vT}")
        for i in range(16):
            a(f"v_sub_f32 v{vN + i}, v{vN + i}, v{vT}")
            a(f"v_sub_f32 v{Sc + i}, v{Sc + i}, v{vT}")
            a(f"v_sub_f32 v{Sn + i}, v{Sn + i}, v{vT}")
        l1 = a.newlabel("SLOWF")
        a(f"s_cmp_lg_u32 s{sClamp}, 0")
        a(f"s_cbranch_scc1 {l1}")
        a(f"v_exp_f32 v{vT + 1}, -v{vT}")
        a("s_nop 0")
        for i in range(64):
            a(f"v_mul_f32 v{vO + i}, v{vO + i}, v{vT + 1}")
        a(f"v_mul_f32 v{vL}, v{vL}, v{vT + 1}")
        a.label(l1)
        a(f"s_mov_b32 s{sClamp}, 0")
        a(f"s_mov_b32 s{sThr}, 1.0")
        sm_plain(R)
        a(f"s_branch {back}")

    slow_blocks = []

    def dma_ops(wide):
        sh = 12 if wide else 11
        n = 4 if wide else 2
        g = []
        g.append([f"s_lshl_b32 s{sT1}, s{sW}, {sh}", f"s_add_u32 m0, s{sRing}, s{sT1}", f"s_add_u32 s{sT0}, s{sKoff}, s{sT1}",
                  f"buffer_load_dwordx4 v{vL16}, {sr(sWS, 4)}, s{sT0} offen lds"])
        for j in range(1, n):
            g.append([f"buffer_load_dwordx4 v{vL16}, {sr(sWS, 4)}, s{sT0} offen offset:{j * 1024} lds"])
        g.append([f"s_add_u32 s{sT0}, s{sRing}, s{sT1}", f"s_add_u32 m0, s{sT0}, 16384", f"s_add_u32 s{sT0}, s{sVoff}, s{sT1}",
                  f"buffer_load_dwordx4 v{vL16}, {sr(sWS, 4)}, s{sT0} offen lds"])
        for j in range(1, n):
            g.append([f"buffer_load_dwordx4 v{vL16}, {sr(sWS, 4)}, s{sT0} offen offset:{j * 1024} lds"])
        return g

    def full_slot(par, mode="generic"):
        R = regs(par)
        lslow, lback = a.newlabel("SLOW"), a.newlabel("BACK")
        extra = {k: [] for k in range(16)}
        if par == 1 and mode != "generic":
            extra[8] = ["s_waitcnt vmcnt(4)" if mode == "dma" else "s_waitcnt vmcnt(0)", "s_barrier"]
            if mode == "dma" and 'nodma' not in ABL:
                for i, g in enumerate(dma_ops(False)):
                    extra[9 + i] += g
            extra[13] += [f"s_add_u32 s{sKoff}, s{sKoff}, 16384", f"s_add_u32 s{sVoff}, s{sVoff}, 16384"]
            extra[14] += [f"s_add_u32 s{sRing}, s{sRing}, 32768", f"s_and_b32 s{sRing}, s{sRing}, 0x1ffff",
                          f"s_add_u32 s{sN}, s{sN}, 1"]
            extra[15] += [f"s_add_u32 s{sT0}, s{sN}, 1", f"s_and_b32 s{sT0}, s{sT0}, 3", f"s_lshl_b32 s{sT0}, s{sT0}, 15"]
        for k in range(16):
            if (k & 1) == 0:
                a(f"s_waitcnt lgkmcnt({D - 2})")
            e = SEQ[k]
            fr = FR + 4 * (k % 8)
            if e[0] == 'Q':
                mfma(a, R['Sn'], fr, vQ + 4 * e[1], vN if e[1] == 0 else None)
            else:
                mfma(a, vO + 16 * e[1], fr, R['Pp'] + 4 * e[2])
            if par == 1 and k == 8 and mode == "generic":
                sync_dma()
            for x in extra[k]:
                a(x)
            kk = k + D
            if kk < 16:
                frag_read(par, kk, False)
            else:
                frag_read(1 - par, kk - 16, par == 1)
            p = k >> 1
            ee = vE + 2 * (p & 1)
            if (k & 1) == 0:
                a(f"v_exp_f32 v{ee}, v{R['Sc'] + 2 * p}")
                a(f"v_exp_f32 v{ee + 1}, v{R['Sc'] + 2 * p + 1}")
            else:
                if p == 0:
                    a(f"v_add_f32 v{vTs}, v{ee}, v{ee + 1}")
                else:
                    a(f"v_add_f32 v{vTmp}, v{ee}, v{ee + 1}")
                    a(f"v_add_f32 v{vTs}, v{vTs}, v{vTmp}")
                a(f"v_cvt_pk_bf16_f32 v{R['Pc'] + p}, v{ee}, v{ee + 1}")
        a(f"v_cmp_lt_f32 vcc, s{sThr}, v{vTs}")
        if par == 1 and mode != "generic":
            a(f"v_mov_b32 v{vCur}, v{vNxt}")
            a(f"v_add_u32 v{vNxt}, s{sT0}, v{vL16}")
        a(f"s_cbranch_vccnz {lslow}")
        a.label(lback)
        a(f"v_add_f32 v{vL}, v{vL}, v{vTs}")
        slow_blocks.append((R, lslow, lback))

    def epilogue():
        a("s_nop 15")
        a(f"v_mov_b32 v{vT}, v{vL}")
        a(f"v_mov_b32 v{vT + 1}, v{vL}")
        a("s_nop 1")
        a(f"v_permlane32_swap_b32 v{vT}, v{vT + 1}")
        a("s_nop 1")
        a(f"v_add_f32 v{vT}, v{vT}, v{vT + 1}")
        a(f"v_rcp_f32 v{vT}, v{vT}")
        a("s_nop 0")
        for i in range(64):
            a(f"v_mul_f32 v{vO + i}, v{vO + i}, v{vT}")
        for i in range(32):
            a(f"v_cvt_pk_bf16_f32 v{vQ + i}, v{vO + 2 * i}, v{vO + 2 * i + 1}")
        a(f"s_lshl_b32 s{sT0}, s{sQb}, 8")
        a(f"s_lshl_b32 s{sT1}, s{sHead}, 3")
        a(f"s_add_u32 s{sT0}, s{sT0}, s{sT1}")
        a(f"s_lshl_b32 s{sT0}, s{sT0}, 10")
        a(f"s_add_u32 s{sT0}, s{sT0}, {WS_CTXB}")
        a(f"s_add_u32 s{sT1}, s{sT0}, 4096")
        for t in range(8):
            a(f"buffer_store_dwordx4 {vr(vQ + 4 * t, 4)}, v{vL16}, {sr(sWS, 4)}, s{sT0 if t < 4 else sT1} offen offset:{(t & 3) * 1024}")

    a(f"s_mov_b32 s{sClamp}, {NEG_BIG:#x}")
    a(f"s_mov_b32 s{sThr}, 1.0")
    a(f"s_mov_b32 s{sPrev}, 4")
    prefetch_next(1) if False else None
    for k in range(D):
        frag_read(0, k, False)
    lLoop, lExit = a.newlabel("ATT_LOOP"), a.newlabel("ATT_EXIT")
    lS1, lS2, lGen = a.newlabel("STEADY1"), a.newlabel("STEADY2"), a.newlabel("GENST")
    a(f"s_lshr_b32 s{sE2}, s{sUd}, 1")
    a(f"s_min_u32 s{sE1}, s{sE2}, s{sNS}")
    a(f"s_sub_u32 s{sT0}, s{sNT}, 2")
    a(f"s_min_u32 s{sE1}, s{sE1}, s{sT0}")
    a(f"s_branch {lGen}")
    a.label(lS1)
    full_slot(0, "dma")
    full_slot(1, "dma")
    a(f"s_cmp_lt_u32 s{sN}, s{sE1}")
    a(f"s_cbranch_scc1 {lS1}")
    a(f"s_mov_b32 s{sPrev}, 4")
    a(f"s_branch {lLoop}")
    a.label(lS2)
    full_slot(0, "nodma")
    full_slot(1, "nodma")
    a(f"s_cmp_lt_u32 s{sN}, s{sE2}")
    a(f"s_cbranch_scc1 {lS2}")
    a(f"s_mov_b32 s{sPrev}, 0")
    a.label(lLoop)
    a(f"s_cmp_lt_u32 s{sN}, s{sE1}")
    a(f"s_cbranch_scc1 {lS1}")
    a(f"s_cmp_lt_u32 s{sN}, s{sNS}")
    a(f"s_cbranch_scc1 {lGen}")
    a(f"s_cmp_lt_u32 s{sN}, s{sE2}")
    a(f"s_cbranch_scc1 {lS2}")
    a.label(lGen)
    for par in range(2):
        lsp, lgo, li, ln = a.newlabel("SPEC"), a.newlabel("GO"), a.newlabel("IDLE"), a.newlabel("NEXT")
        a(f"s_lshl_b32 s{sU}, s{sN}, 1")
        if par == 0:
            a(f"s_sub_i32 s{sU}, s{sU}, 1")
        if 'slotstamp' in ABL and par == 0:
            a("s_memtime s[84:85]")
            a("s_waitcnt lgkmcnt(0)")
            a(f"s_mov_b32 m0, s{sN}")
            a("s_nop 0")
            a("v_writelane_b32 v252, s84, m0")
        a(f"s_add_i32 s{sT0}, s{sU}, 2")
        a(f"s_cmp_gt_i32 s{sT0}, s{sUd}")
        a(f"s_cbranch_scc1 {lsp}")
        if par == 1:
            a(f"s_cmp_eq_u32 s{sU}, 0")
            a(f"s_cbranch_scc1 {lsp}")
        a.label(lgo)
        full_slot(par)
        a(f"s_cmp_le_i32 s{sU}, s{sUd}")
        a(f"s_cbranch_scc1 {ln}")
        epilogue()
        a(f"s_branch {ln}")
        a.label(lsp)
        a(f"s_sub_i32 s{sT0}, s{sU}, 1")
        a(f"s_cmp_gt_i32 s{sT0}, s{sUd}")
        a(f"s_cbranch_scc1 {li}")
        lz = a.newlabel("SP")
        a(f"s_cmp_lg_u32 s{sU}, 0")
        a(f"s_cbranch_scc1 {lz}")
        a(f"s_mov_b32 s{sThr}, -1.0")
        a.label(lz)
        lm, lall = a.newlabel("SP"), a.newlabel("SP")
        a(f"s_add_i32 s{sT0}, s{sU}, 1")
        a(f"s_cmp_lt_i32 s{sT0}, s{sUd}")
        a(f"s_cbranch_scc1 {lgo}")
        a(f"v_mov_b32 v{vT}, {NEG_BIG:#x}")
        a(f"s_cmp_gt_i32 s{sT0}, s{sUd}")
        a(f"s_cbranch_scc1 {lall}")
        for r in range(16):
            a(f"v_cmp_gt_i32 vcc, {8 * (r >> 2) + (r & 3)}, v{vTq}")
            a("s_nop 1")
            a(f"v_cndmask_b32 v{vN + r}, v{vN + r}, v{vT}, vcc")
        a("s_nop 1")
        a(f"s_branch {lgo}")
        a.label(lall)
        for r in range(16):
            a(f"v_mov_b32 v{vN + r}, v{vT}")
        a("s_nop 1")
        a(f"s_branch {lgo}")
        a.label(li)
        if par == 1:
            sync_dma()
        a.label(ln)
    a(f"v_mov_b32 v{vCur}, v{vNxt}")
    a(f"s_add_u32 s{sN}, s{sN}, 1")
    a(f"s_add_u32 s{sT0}, s{sN}, 1")
    a(f"s_and_b32 s{sT0}, s{sT0}, 3")
    a(f"s_lshl_b32 s{sT0}, s{sT0}, 15")
    a(f"v_add_u32 v{vNxt}, s{sT0}, v{vL16}")
    a(f"s_cmp_le_u32 s{sN}, s{sNT}")
    a(f"s_cbranch_scc1 {lLoop}")
    a(f"s_branch {lExit}")
    for (R, lab, back) in slow_blocks:
        slow_path(R, lab, back)
    a.label(lExit)
    a("s_waitcnt vmcnt(0) lgkmcnt(0)")
    stamp(a, 2)
    stamp(a, 6, True)
    if 'slotstamp' in ABL:
        a(f"s_lshl_b32 s{sT0}, s2, 3")
        a(f"s_add_u32 s{sT0}, s{sT0}, s{sW}")
        a(f"s_lshl_b32 s{sT0}, s{sT0}, 8")
        a(f"s_add_u32 s{sT0}, s{sT0}, {gen.WS_STAMP + (1 << 20)}")
        a("v_lshlrev_b32 v2, 2, v1")
        a(f"buffer_store_dword v252, v2, {sr(sWS, 4)}, s{sT0} offen")
    stamp_flush(a, 7, sWS)
```

```python
from gen import *
import gen

STG = 40960

def phase_out(a, s_task):
    sAct, sWo, sWS, sOut = SRD0, SRD1, SRD3, SRD2
    make_srd(a, sWS, P_WS, WS_BYTES)
    make_srd(a, sOut, P_OUT, 2048 * 1152 * 2)
    sW = S_WAVE
    sX, sIdx, sT0, sT1, sRt, sCt, sSplit, sAoff, sWoff, sM0a, sM0w, sIsA = [S_T + i for i in range(12)]
    a(f"s_and_b32 s{sX}, s{s_task}, 7")
    a(f"s_lshr_b32 s{sIdx}, s{s_task}, 3")
    vA0, vA1, vW, vRA, vRW, vX = 2, 3, 4, 8, 12, 16
    F0, F1, ACC = 24, 44, 64
    lA, lJ = a.newlabel("OP_A"), a.newlabel("OP_J")

    def common_w_setup():
        a(f"s_mul_i32 s{sT0}, s{sW}, 192")
        a(f"s_movk_i32 s{sT1}, 2731")
        for j in range(3):
            a(f"v_add_u32 v{vX}, s{sT0}, v1")
            if j:
                a(f"v_add_u32 v{vX}, {64 * j}, v{vX}")
            a(f"v_mul_lo_u32 v{vX + 1}, v{vX}, s{sT1}")
            a(f"v_lshrrev_b32 v{vX + 1}, 16, v{vX + 1}")
            a(f"v_mul_u32_u24 v{vX + 2}, 24, v{vX + 1}")
            a(f"v_sub_u32 v{vX + 2}, v{vX}, v{vX + 2}")
            a(f"v_bfe_u32 v{vX + 3}, v{vX + 1}, 1, 1")
            a(f"v_lshlrev_b32 v{vX + 3}, 2, v{vX + 3}")
            a(f"v_xor_b32 v{vX + 2}, v{vX + 2}, v{vX + 3}")
            a(f"v_mul_u32_u24 v{vX + 1}, 1152, v{vX + 1}")
            a(f"v_lshl_add_u32 v{vW + j}, v{vX + 2}, 4, v{vX + 1}")
        a(f"s_mul_i32 s{sT0}, s{sCt}, 384")
        for j in range(3):
            a(f"v_add_u32 v{vW + j}, s{sT0}, v{vW + j}")
        a(f"s_mul_i32 s{sM0w}, s{sW}, 3072")
        a(f"s_add_u32 s{sM0w}, s{sM0w}, 16384")
        a(f"s_lshl_b32 s{sM0a}, s{sW}, 11")

    def w_read_addrs(permuted):
        a(f"v_bfe_u32 v{vX}, v1, 2, 2")
        a(f"v_lshrrev_b32 v{vX + 1}, 5, v1")
        a(f"v_lshl_add_u32 v{vX + 1}, v{vX + 1}, {2 if permuted else 3}, v{vX}")
        a(f"s_lshr_b32 s{sT0}, s{sW}, 2")
        a(f"s_lshl_b32 s{sT0}, s{sT0}, 5")
        a(f"v_add_u32 v{vX + 1}, s{sT0}, v{vX + 1}")
        a(f"v_mul_u32_u24 v{vX + 1}, 384, v{vX + 1}")
        a(f"v_add_u32 v{vX + 1}, 16384, v{vX + 1}")
        a(f"v_and_b32 v{vX + 2}, 1, v1")
        a(f"v_lshl_add_u32 v{vX + 1}, v{vX + 2}, 3, v{vX + 1}")
        a(f"v_bfe_u32 v{vX + 2}, v1, 4, 1")
        a(f"v_bfe_u32 v{vX + 3}, v1, 1, 1")
        a(f"v_lshl_add_u32 v{vX + 2}, v{vX + 2}, 1, v{vX + 3}")
        a(f"v_bfe_u32 v{vX + 3}, v1, 3, 1")
        a(f"v_lshlrev_b32 v{vX + 3}, 2, v{vX + 3}")
        a(f"s_bfe_u32 s{sT0}, s{sW}, 0x10001")
        a(f"s_mul_i32 s{sT0}, s{sT0}, 12")
        for c in range(3):
            a(f"s_add_u32 s{sT1}, s{sT0}, {4 * c}")
            a(f"v_add_u32 v{vX + 4}, s{sT1}, v{vX + 2}")
            a(f"v_xor_b32 v{vX + 4}, v{vX + 4}, v{vX + 3}")
            a(f"v_lshl_add_u32 v{vRW + c}, v{vX + 4}, 4, v{vX + 1}")

    def w_dma(buf):
        for j in range(3):
            a(f"s_add_u32 m0, s{sM0w}, {buf * STG + j * 1024}")
            a("s_nop 0")
            a(f"buffer_load_dwordx4 v{vW + j}, {sr(sWo, 4)}, s{sWoff} offen lds")
        a(f"s_add_u32 s{sWoff}, s{sWoff}, {64 * 1152}")

    def shift(delta):
        for i in range(2):
            a(f"v_add_u32 v{vRA + i}, {delta & 0xffffffff:#x}, v{vRA + i}")
        for i in range(3):
            a(f"v_add_u32 v{vRW + i}, {delta & 0xffffffff:#x}, v{vRW + i}")

    def mainloop(NS, act_dma, act_read, permuted):
        def reads(F, t):
            act_read(F, t)
            for c in range(3):
                for j in range(2):
                    a(f"ds_read_b64_tr_b16 {vr(F + 8 + 4 * c + 2 * j, 2)}, v{vRW + c} offset:{(16 * t + (8 if permuted else 4) * j) * 384}")
        def mf(F, first):
            for q in range(2):
                for c in range(3):
                    mfma(a, ACC + 16 * (3 * q + c), F + 8 + 4 * c, F + 4 * q, "0" if first else None)
        for s in range(3):
            act_dma(s); w_dma(s)
        a("s_waitcnt vmcnt(10)")
        a("s_barrier")
        reads(F0, 0)
        for s in range(NS):
            reads(F1, 1)
            a("s_waitcnt lgkmcnt(8)")
            mf(F0, s == 0)
            if s < NS - 1:
                a(f"s_waitcnt vmcnt({5 if s + 2 < NS else 0}) lgkmcnt(0)")
                a("s_barrier")
                if s + 3 < NS:
                    act_dma(s % 3); w_dma(s % 3)
                shift(STG if (s % 3) < 2 else -2 * STG)
                reads(F0, 0)
            else:
                a("s_waitcnt lgkmcnt(0)")
            mf(F1, False)

    a(f"s_cmp_ge_u32 s{sIdx}, 24")
    a(f"s_cbranch_scc1 {lA}")
    a(f"s_mov_b32 s{sIsA}, 0")
    make_srd(a, sWo, P_BWO, 4096 * 576 * 2)
    a(f"s_lshr_b32 s{sSplit}, s{sX}, 1")
    a(f"s_mul_i32 s{sT0}, s{sIdx}, 21846")
    a(f"s_lshr_b32 s{sT0}, s{sT0}, 16")
    a(f"s_mul_i32 s{sT1}, s{sT0}, 3")
    a(f"s_sub_u32 s{sCt}, s{sIdx}, s{sT1}")
    a(f"s_and_b32 s{sRt}, s{sX}, 1")
    a(f"s_lshl_b32 s{sRt}, s{sRt}, 3")
    a(f"s_add_u32 s{sRt}, s{sRt}, s{sT0}")
    common_w_setup()
    w_read_addrs(True)
    a(f"s_mul_i32 s{sWoff}, s{sSplit}, {1024 * 1152}")
    a(f"v_lshlrev_b32 v{vA0}, 4, v1")
    a(f"s_lshl_b32 s{sT0}, s{sRt}, 2")
    a(f"s_lshr_b32 s{sT1}, s{sW}, 1")
    a(f"s_add_u32 s{sT0}, s{sT0}, s{sT1}")
    a(f"s_lshl_b32 s{sT0}, s{sT0}, 8")
    a(f"s_lshl_b32 s{sT1}, s{sSplit}, 6")
    a(f"s_add_u32 s{sT0}, s{sT0}, s{sT1}")
    a(f"s_and_b32 s{sT1}, s{sW}, 1")
    a(f"s_lshl_b32 s{sT1}, s{sT1}, 1")
    a(f"s_add_u32 s{sT0}, s{sT0}, s{sT1}")
    a(f"s_lshl_b32 s{sT0}, s{sT0}, 10")
    a(f"s_add_u32 s{sAoff}, s{sT0}, {WS_CTXB}")
    a(f"s_and_b32 s{sT0}, s{sW}, 1")
    a(f"s_lshl_b32 s{sT0}, s{sT0}, 13")
    a(f"s_lshr_b32 s{sT1}, s{sW}, 2")
    a(f"s_lshl_b32 s{sT1}, s{sT1}, 11")
    a(f"s_add_u32 s{sT0}, s{sT0}, s{sT1}")
    a(f"v_add_u32 v{vRA}, s{sT0}, v{vA0}")
    a(f"v_mov_b32 v{vRA + 1}, v{vRA}")

    def actB_dma(buf):
        a(f"s_add_u32 m0, s{sM0a}, {buf * STG}")
        a("s_nop 0")
        a(f"buffer_load_dwordx4 v{vA0}, {sr(sWS, 4)}, s{sAoff} offen lds")
        a(f"buffer_load_dwordx4 v{vA0}, {sr(sWS, 4)}, s{sAoff} offen offset:1024 lds")
        a(f"s_add_u32 s{sAoff}, s{sAoff}, 4096")

    def actB_read(F, t):
        for q in range(2):
            a(f"ds_read_b128 {vr(F + 4 * q, 4)}, v{vRA} offset:{q * 4096 + t * 1024}")
    mainloop(16, actB_dma, actB_read, True)
    a(f"s_branch {lJ}")
    a.label(lA)
    a(f"s_mov_b32 s{sIsA}, 1")
    make_srd(a, sWo, P_AWO, 576 * 576 * 2)
    a(f"s_mul_i32 s{sT0}, s{sX}, 6")
    a(f"s_add_u32 s{sT0}, s{sT0}, s{sIdx}")
    a(f"s_sub_u32 s{sT0}, s{sT0}, 24")
    a(f"s_mul_i32 s{sRt}, s{sT0}, 21846")
    a(f"s_lshr_b32 s{sRt}, s{sRt}, 16")
    a(f"s_mul_i32 s{sT1}, s{sRt}, 3")
    a(f"s_sub_u32 s{sCt}, s{sT0}, s{sT1}")
    a(f"s_mov_b32 s{sSplit}, 0")
    common_w_setup()
    w_read_addrs(False)
    a(f"s_mov_b32 s{sWoff}, 0")
    a(f"v_lshrrev_b32 v{vX}, 3, v1")
    a(f"s_lshl_b32 s{sT0}, s{sRt}, 7")
    a(f"s_lshl_b32 s{sT1}, s{sW}, 4")
    a(f"s_add_u32 s{sT0}, s{sT0}, s{sT1}")
    a(f"v_add_u32 v{vX}, s{sT0}, v{vX}")
    a(f"v_mul_u32_u24 v{vX}, 1152, v{vX}")
    a(f"v_lshrrev_b32 v{vX + 1}, 4, v1")
    a(f"v_and_b32 v{vX + 2}, 7, v1")
    a(f"v_xor_b32 v{vX + 3}, v{vX + 2}, v{vX + 1}")
    a(f"v_lshl_add_u32 v{vA0}, v{vX + 3}, 4, v{vX}")
    a(f"v_xor_b32 v{vX + 3}, 4, v{vX + 3}")
    a(f"v_lshl_add_u32 v{vA1}, v{vX + 3}, 4, v{vX}")
    a(f"v_add_u32 v{vA1}, {8 * 1152}, v{vA1}")
    a(f"s_mov_b32 s{sAoff}, {WS_CTXA}")
    a(f"v_and_b32 v{vX}, 31, v1")
    a(f"s_and_b32 s{sT0}, s{sW}, 1")
    a(f"s_lshl_b32 s{sT0}, s{sT0}, 6")
    a(f"v_add_u32 v{vX + 1}, s{sT0}, v{vX}")
    a(f"v_lshlrev_b32 v{vX + 1}, 7, v{vX + 1}")
    a(f"v_bfe_u32 v{vX + 2}, v1, 1, 3")
    a(f"v_lshrrev_b32 v{vX + 3}, 5, v1")
    a(f"s_lshr_b32 s{sT0}, s{sW}, 2")
    a(f"s_lshl_b32 s{sT0}, s{sT0}, 2")
    a(f"v_add_u32 v{vX + 3}, s{sT0}, v{vX + 3}")
    for t in range(2):
        a(f"v_add_u32 v{vX + 4}, {2 * t}, v{vX + 3}")
        a(f"v_xor_b32 v{vX + 4}, v{vX + 4}, v{vX + 2}")
        a(f"v_lshl_add_u32 v{vRA + t}, v{vX + 4}, 4, v{vX + 1}")

    def actA_dma(buf):
        for j in range(2):
            a(f"s_add_u32 m0, s{sM0a}, {buf * STG + j * 1024}")
            a("s_nop 0")
            a(f"buffer_load_dwordx4 v{vA0 + j}, {sr(sWS, 4)}, s{sAoff} offen lds")
        a(f"s_add_u32 s{sAoff}, s{sAoff}, 128")

    def actA_read(F, t):
        for q in range(2):
            a(f"ds_read_b128 {vr(F + 4 * q, 4)}, v{vRA + t} offset:{q * 4096}")
    mainloop(9, actA_dma, actA_read, False)
    a.label(lJ)
    a("s_nop 7")
    a("s_barrier")
    a(f"v_lshlrev_b32 v{vX}, 4, v1")
    a(f"s_and_b32 s{sT0}, s{sW}, 3")
    a(f"s_mul_i32 s{sT0}, s{sT0}, 24576")
    a(f"v_add_u32 v{vX}, s{sT0}, v{vX}")
    l1, l2 = a.newlabel("OP_R"), a.newlabel("OP_R")
    a(f"s_cmp_lt_u32 s{sW}, 4")
    a(f"s_cbranch_scc1 {l1}")
    a("s_nop 7")
    for i in range(24):
        a(f"ds_write_b128 v{vX}, {vr(ACC + 4 * i, 4)} offset:{i * 1024}")
    a("s_waitcnt lgkmcnt(0)")
    a("s_barrier")
    a(f"s_branch {l2}")
    a.label(l1)
    a("s_barrier")
    for i in range(24):
        a(f"ds_read_b128 {vr(160 + 4 * i, 4)}, v{vX} offset:{i * 1024}")
    for i in range(24):
        a(f"s_waitcnt lgkmcnt({23 - i})" if 23 - i < 16 else "s_nop 0")
        if 23 - i >= 16:
            continue
    a("s_waitcnt lgkmcnt(0)")
    for i in range(96):
        a(f"v_add_f32 v{ACC + i}, v{ACC + i}, v{160 + i}")
    a(f"v_and_b32 v{vX}, 31, v1")
    a(f"s_lshl_b32 s{sT0}, s{sRt}, 7")
    a(f"s_and_b32 s{sT1}, s{sW}, 1")
    a(f"s_lshl_b32 s{sT1}, s{sT1}, 6")
    a(f"s_add_u32 s{sT0}, s{sT0}, s{sT1}")
    a(f"v_add_u32 v{vX}, s{sT0}, v{vX}")
    a(f"v_lshrrev_b32 v{vX + 1}, 5, v1")
    a(f"s_mul_i32 s{sT0}, s{sCt}, 192")
    a(f"s_bfe_u32 s{sT1}, s{sW}, 0x10001")
    a(f"s_mul_i32 s{sT1}, s{sT1}, 96")
    a(f"s_add_u32 s{sT0}, s{sT0}, s{sT1}")
    lB = a.newlabel("OP_SB")
    a(f"s_cmp_eq_u32 s{sIsA}, 0")
    a(f"s_cbranch_scc1 {lB}")
    a(f"v_mul_u32_u24 v{vX}, 2304, v{vX}")
    a(f"v_lshl_add_u32 v{vX}, v{vX + 1}, 3, v{vX}")
    a(f"s_lshl_b32 s{sT0}, s{sT0}, 1")
    a(f"s_add_u32 s{sT1}, s{sT0}, {32 * 2304}")
    for q in range(2):
        for c in range(3):
            d = ACC + 16 * (3 * q + c)
            for i in range(8):
                a(f"v_cvt_pk_bf16_f32 v{160 + 8 * (3 * q + c) + i}, v{d + 2 * i}, v{d + 2 * i + 1}")
            for g in range(4):
                a(f"buffer_store_dwordx2 {vr(160 + 8 * (3 * q + c) + 2 * g, 2)}, v{vX}, {sr(sOut, 4)}, s{sT1 if q else sT0} offen offset:{c * 64 + g * 16}")
    a(f"s_branch {l2}")
    a.label(lB)
    a(f"v_mul_u32_u24 v{vX}, 2304, v{vX}")
    a(f"v_lshl_add_u32 v{vX}, v{vX + 1}, 4, v{vX}")
    a(f"s_lshl_b32 s{sT0}, s{sT0}, 2")
    a(f"s_mul_i32 s{sT1}, s{sSplit}, {2048 * 2304}")
    a(f"s_add_u32 s{sT0}, s{sT0}, s{sT1}")
    a(f"s_add_u32 s{sT0}, s{sT0}, {WS_PART}")
    a(f"s_add_u32 s{sT1}, s{sT0}, {32 * 2304}")
    for q in range(2):
        for c in range(3):
            d = ACC + 16 * (3 * q + c)
            for g in range(4):
                a(f"buffer_store_dwordx4 {vr(d + 4 * g, 4)}, v{vX}, {sr(sWS, 4)}, s{sT1 if q else sT0} offen offset:{c * 128 + g * 32}")
    a.label(l2)


def phase_reduce(a, s_task):
    sWS, sOut = SRD3, SRD2
    make_srd(a, sWS, P_WS, WS_BYTES)
    make_srd(a, sOut, P_OUT, 2048 * 1152 * 2)
    sT0, sT1 = S_T, S_T + 1
    a(f"s_lshl_b32 s{sT0}, s{s_task}, 9")
    a(f"v_add_u32 v2, s{sT0}, v0")
    a(f"v_lshlrev_b32 v3, 5, v2")
    for s in range(4):
        a(f"s_mov_b32 s{sT0}, {WS_PART + s * 2048 * 2304}")
        a(f"buffer_load_dwordx4 {vr(8 + 8 * s, 4)}, v3, {sr(sWS, 4)}, s{sT0} offen")
        a(f"buffer_load_dwordx4 {vr(12 + 8 * s, 4)}, v3, {sr(sWS, 4)}, s{sT0} offen offset:16")
    a(f"s_mov_b32 s{sT0}, 58255")
    a(f"v_mul_lo_u32 v4, v2, s{sT0}")
    a(f"s_mov_b32 s{sT0}, {(1 << 32) // 72 + 1}")
    a(f"v_mul_hi_u32 v4, v2, s{sT0}")
    a(f"v_mul_u32_u24 v5, 72, v4")
    a(f"v_sub_u32 v5, v2, v5")
    a(f"v_mul_u32_u24 v4, 2304, v4")
    a(f"v_lshl_add_u32 v4, v5, 4, v4")
    a("s_waitcnt vmcnt(0)")
    for i in range(8):
        a(f"v_add_f32 v{8 + i}, v{8 + i}, v{16 + i}")
        a(f"v_add_f32 v{24 + i}, v{24 + i}, v{32 + i}")
        a(f"v_add_f32 v{8 + i}, v{8 + i}, v{24 + i}")
    for i in range(4):
        a(f"v_cvt_pk_bf16_f32 v{40 + i}, v{8 + 2 * i}, v{9 + 2 * i}")
    a(f"buffer_store_dwordx4 v[40:43], v4, {sr(sOut, 4)}, 0 offen offset:1152")
```

```python
from gen import *
import gen
NEG_BIG = 0xff7fffff

def phase_aproj(a, s_task):
    sX, sWQ, sWK, sWS, sWV = SRD0, SRD1, SRD2, SRD3, SRD4
    make_srd(a, sX, P_AX, 2048 * 576 * 2)
    make_srd(a, sWQ, P_AWQ, 576 * 576 * 2)
    make_srd(a, sWK, P_AWK, 576 * 18 * 2)
    make_srd(a, sWV, P_AWV, 576 * 18 * 2)
    make_srd(a, sWS, P_WS, WS_BYTES)
    sW = S_WAVE
    sRt, sCp, sT0, sT1, sAoff, sM0a, sEx = S_T, S_T + 1, S_T + 2, S_T + 3, S_T + 4, S_T + 5, S_T + 6
    a(f"s_mul_i32 s{sRt}, s{s_task}, 6554")
    a(f"s_lshr_b32 s{sRt}, s{sRt}, 16")
    a(f"s_mul_i32 s{sT0}, s{sRt}, 10")
    a(f"s_sub_u32 s{sCp}, s{s_task}, s{sT0}")
    ACT0 = 73728
    vA0, vA1, vW, vRA, vRW, vRW2, vX = 2, 3, 4, 5, 9, 10, 11
    F0, F1, ACC = 20, 28, 48
    a(f"v_lshrrev_b32 v{vX}, 3, v1")
    a(f"s_lshl_b32 s{sT0}, s{sRt}, 7")
    a(f"s_lshl_b32 s{sT1}, s{sW}, 4")
    a(f"s_add_u32 s{sT0}, s{sT0}, s{sT1}")
    a(f"v_add_u32 v{vX}, s{sT0}, v{vX}")
    a(f"s_movk_i32 s{sT0}, 1152")
    a(f"v_mul_lo_u32 v{vX}, v{vX}, s{sT0}")
    a(f"v_lshrrev_b32 v{vX + 1}, 4, v1")
    a(f"v_and_b32 v{vX + 2}, 7, v1")
    a(f"v_xor_b32 v{vX + 3}, v{vX + 2}, v{vX + 1}")
    a(f"v_lshl_add_u32 v{vA0}, v{vX + 3}, 4, v{vX}")
    a(f"v_xor_b32 v{vX + 3}, 4, v{vX + 3}")
    a(f"v_lshl_add_u32 v{vA1}, v{vX + 3}, 4, v{vX}")
    a(f"v_add_u32 v{vA1}, {8 * 1152}, v{vA1}")
    a(f"v_lshrrev_b32 v{vX}, 3, v1")
    a(f"v_mul_lo_u32 v{vX}, v{vX}, s{sT0}")
    a(f"v_bfe_u32 v{vX + 1}, v1, 4, 1")
    a(f"v_lshlrev_b32 v{vX + 1}, 2, v{vX + 1}")
    a(f"v_xor_b32 v{vX + 1}, v{vX + 1}, v{vX + 2}")
    a(f"v_lshl_add_u32 v{vW}, v{vX + 1}, 4, v{vX}")
    a(f"s_lshl_b32 s{sT0}, s{sCp}, 7")
    a(f"v_add_u32 v{vW}, s{sT0}, v{vW}")
    a(f"v_and_b32 v{vX}, 31, v1")
    a(f"s_and_b32 s{sT0}, s{sW}, 3")
    a(f"s_lshl_b32 s{sT0}, s{sT0}, 5")
    a(f"v_add_u32 v{vX + 1}, s{sT0}, v{vX}")
    a(f"v_lshlrev_b32 v{vX + 1}, 7, v{vX + 1}")
    a(f"v_add_u32 v{vX + 1}, {ACT0}, v{vX + 1}")
    a(f"v_bfe_u32 v{vX + 2}, v1, 1, 3")
    a(f"v_lshrrev_b32 v{vX + 3}, 5, v1")
    for t in range(4):
        a(f"v_add_u32 v{vX + 4}, {2 * t}, v{vX + 3}")
        a(f"v_xor_b32 v{vX + 4}, v{vX + 4}, v{vX + 2}")
        a(f"v_lshl_add_u32 v{vRA + t}, v{vX + 4}, 4, v{vX + 1}")
    a(f"v_bfe_u32 v{vX}, v1, 2, 2")
    a(f"v_lshrrev_b32 v{vX + 1}, 5, v1")
    a(f"v_lshl_add_u32 v{vX + 1}, v{vX + 1}, 3, v{vX}")
    a(f"v_lshlrev_b32 v{vX + 1}, 7, v{vX + 1}")
    a(f"v_bfe_u32 v{vX + 2}, v1, 4, 1")
    a(f"v_bfe_u32 v{vX + 3}, v1, 1, 1")
    a(f"v_lshl_add_u32 v{vX + 2}, v{vX + 2}, 1, v{vX + 3}")
    a(f"s_lshr_b32 s{sT0}, s{sW}, 2")
    a(f"s_lshl_b32 s{sT0}, s{sT0}, 2")
    a(f"v_add_u32 v{vX + 2}, s{sT0}, v{vX + 2}")
    a(f"v_bfe_u32 v{vX + 3}, v1, 3, 1")
    a(f"v_lshlrev_b32 v{vX + 3}, 2, v{vX + 3}")
    a(f"v_xor_b32 v{vX + 2}, v{vX + 2}, v{vX + 3}")
    a(f"v_lshl_add_u32 v{vX + 1}, v{vX + 2}, 4, v{vX + 1}")
    a(f"v_and_b32 v{vX + 2}, 1, v1")
    a(f"v_lshl_add_u32 v{vRW}, v{vX + 2}, 3, v{vX + 1}")
    a(f"v_add_u32 v{vRW2}, 0x10000, v{vRW}")
    a(f"s_lshl_b32 s{sM0a}, s{sW}, 11")
    a(f"s_add_u32 s{sM0a}, s{sM0a}, {ACT0}")
    a(f"s_mov_b32 s{sAoff}, 0")

    def act_dma(buf):
        for j in range(2):
            a(f"s_add_u32 m0, s{sM0a}, {buf * 16384 + j * 1024}")
            a("s_nop 0")
            a(f"buffer_load_dwordx4 v{vA0 + j}, {sr(sX, 4)}, s{sAoff} offen lds")
        a(f"s_add_u32 s{sAoff}, s{sAoff}, 128")

    lkv, lw = a.newlabel("AP_KV"), a.newlabel("AP_W")
    a(f"s_cmp_eq_u32 s{sCp}, 9")
    a(f"s_cbranch_scc1 {lkv}")
    a(f"s_mul_i32 s{sT1}, s{sW}, {8 * 1152}")
    for j in range(9):
        a(f"s_lshl_b32 s{sT0}, s{sW}, 10")
        a(f"s_add_u32 m0, s{sT0}, {j * 8192}")
        a(f"s_add_u32 s{sT0}, s{sT1}, {j * 64 * 1152}")
        a(f"buffer_load_dwordx4 v{vW}, {sr(sWQ, 4)}, s{sT0} offen lds")
    a(f"s_branch {lw}")
    a.label(lkv)
    for i in range(4):
        a(f"v_mov_b32 v{F0 + i}, 0")
    a(f"v_lshlrev_b32 v{vX}, 4, v0")
    for i in range(8):
        a(f"ds_write_b128 v{vX}, {vr(F0, 4)} offset:{i * 8192}")
    a(f"v_add_u32 v{vX}, 0x10000, v{vX}")
    a(f"ds_write_b128 v{vX}, {vr(F0, 4)}")
    a("s_waitcnt lgkmcnt(0)")
    a("s_barrier")
    a(f"s_movk_i32 s{sT0}, 7282")
    a(f"s_movk_i32 s{sT1}, 5184")
    for it in range(11):
        idx, k, j, ad, d0, d1 = vX, vX + 1, vX + 2, vX + 3, F0, F0 + 1
        a(f"v_add_u32 v{idx}, {512 * it}, v0")
        a(f"v_lshlrev_b32 v{ad}, 2, v{idx}")
        a(f"buffer_load_dword v{d0}, v{ad}, {sr(sWK, 4)}, 0 offen")
        a(f"buffer_load_dword v{d1}, v{ad}, {sr(sWV, 4)}, 0 offen")
        a(f"v_mul_lo_u32 v{k}, v{idx}, s{sT0}")
        a(f"v_lshrrev_b32 v{k}, 16, v{k}")
        a(f"v_mul_u32_u24 v{j}, 9, v{k}")
        a(f"v_sub_u32 v{j}, v{idx}, v{j}")
        a(f"v_bfe_u32 v{ad}, v{k}, 1, 1")
        a(f"v_lshlrev_b32 v{ad}, 2, v{ad}")
        a(f"v_lshrrev_b32 v{vX + 4}, 2, v{j}")
        a(f"v_xor_b32 v{ad}, v{ad}, v{vX + 4}")
        a(f"v_lshlrev_b32 v{ad}, 4, v{ad}")
        a(f"v_lshl_add_u32 v{ad}, v{k}, 7, v{ad}")
        a(f"v_and_b32 v{j}, 3, v{j}")
        a(f"v_lshl_add_u32 v{ad}, v{j}, 2, v{ad}")
        a(f"v_xor_b32 v{vX + 4}, 64, v{ad}")
        a(f"v_cmp_gt_u32 vcc, s{sT1}, v{idx}")
        a(f"s_and_saveexec_b64 {sr(sEx, 2)}, vcc")
        a("s_waitcnt vmcnt(0)")
        a(f"ds_write_b32 v{ad}, v{d0}")
        a(f"ds_write_b32 v{vX + 4}, v{d1}")
        a(f"s_mov_b64 exec, {sr(sEx, 2)}")
    a("s_waitcnt lgkmcnt(0)")
    a.label(lw)
    for s in range(5):
        act_dma(s)
    lV, lE = a.newlabel("AP_V"), a.newlabel("AP_E")
    a(f"s_cmp_eq_u32 s{sCp}, 9")
    a(f"s_cselect_b32 s{sT1}, s{sW}, 0")
    a(f"s_cmp_ge_u32 s{sT1}, 4")
    a(f"s_cbranch_scc1 {lV}")

    def reads(F, s, t):
        a(f"ds_read_b128 {vr(F, 4)}, v{vRA + t} offset:{(s % 5) * 16384}" if (s % 5) * 16384 < 65536 else None)
    for vvar in (False, True):
        if vvar:
            a.label(lV)
        for s in range(9):
            rem = (min(8, max(4, s + 3)) - s) * 2
            a(f"s_waitcnt vmcnt({rem})")
            a("s_barrier")
            if s >= 1 and s + 4 < 9:
                act_dma((s + 4) % 5)
            for t in range(4):
                F = F0 if (t & 1) == 0 else F1
                a(f"ds_read_b128 {vr(F, 4)}, v{vRA + t} offset:{(s % 5) * 16384 if (s % 5) < 4 else 0}" if (s % 5) < 4 else
                  f"v_add_u32 v{vX}, 0x10000, v{vRA + t}\nds_read_b128 {vr(F, 4)}, v{vX}")
                for j in range(2):
                    off = (64 * s + 16 * t + 4 * j) * 128
                    if off < 65536:
                        a(f"ds_read_b64_tr_b16 {vr(F + 4 + 2 * j, 2)}, v{vRW} offset:{off}")
                    else:
                        a(f"ds_read_b64_tr_b16 {vr(F + 4 + 2 * j, 2)}, v{vRW2} offset:{off - 65536}")
                a("s_waitcnt lgkmcnt(0)")
                A, B = (F, F + 4) if vvar else (F + 4, F)
                mfma(a, ACC, A, B, "0" if (s == 0 and t == 0) else None)
        if not vvar:
            a(f"s_branch {lE}")
    a.label(lE)
    a("s_nop 15")
    lq, ldone = a.newlabel("AP_Q"), a.newlabel("AP_D")
    a(f"s_cmp_lg_u32 s{sCp}, 9")
    a(f"s_cbranch_scc1 {lq}")
    for i in range(8):
        a(f"v_cvt_pk_bf16_f32 v{F0 + i}, v{ACC + 2 * i}, v{ACC + 2 * i + 1}")
    lk = a.newlabel("AP_K")
    a(f"s_mov_b32 s{sT1}, {WS_KAF}")
    a(f"s_cmp_lt_u32 s{sW}, 4")
    a(f"s_cbranch_scc1 {lk}")
    a(f"s_mov_b32 s{sT1}, {WS_VAF}")
    a(f"v_and_b32 v{vX}, 27, v1")
    a(f"v_cmp_eq_u32 vcc, 18, v{vX}")
    a(f"v_mov_b32 v{vX + 1}, 0x3f803f80")
    a("s_nop 0")
    for i in range(8):
        a(f"v_cndmask_b32 v{F0 + i}, v{F0 + i}, v{vX + 1}, vcc")
    a.label(lk)
    a(f"s_lshl_b32 s{sT0}, s{sRt}, 2")
    a(f"s_and_b32 s{sM0a}, s{sW}, 3")
    a(f"s_add_u32 s{sT0}, s{sT0}, s{sM0a}")
    a(f"s_lshl_b32 s{sT0}, s{sT0}, 11")
    a(f"s_add_u32 s{sT0}, s{sT0}, s{sT1}")
    a(f"v_lshlrev_b32 v{vX}, 4, v1")
    a(f"buffer_store_dwordx4 {vr(F0, 4)}, v{vX}, {sr(sWS, 4)}, s{sT0} offen")
    a(f"buffer_store_dwordx4 {vr(F0 + 4, 4)}, v{vX}, {sr(sWS, 4)}, s{sT0} offen offset:1024")
    a(f"s_branch {ldone}")
    a.label(lq)
    a(f"s_mov_b32 s{sT0}, {f32bits(C_A):#x}")
    for i in range(16):
        a(f"v_mul_f32 v{ACC + i}, s{sT0}, v{ACC + i}")
    for i in range(8):
        a(f"v_cvt_pk_bf16_f32 v{F0 + i}, v{ACC + 2 * i}, v{ACC + 2 * i + 1}")
    a(f"v_and_b32 v{vX}, 31, v1")
    a(f"s_lshl_b32 s{sT0}, s{sRt}, 7")
    a(f"s_and_b32 s{sT1}, s{sW}, 3")
    a(f"s_lshl_b32 s{sT1}, s{sT1}, 5")
    a(f"s_add_u32 s{sT0}, s{sT0}, s{sT1}")
    a(f"v_add_u32 v{vX}, s{sT0}, v{vX}")
    a(f"s_movk_i32 s{sT0}, 1152")
    a(f"v_mul_lo_u32 v{vX}, v{vX}, s{sT0}")
    a(f"v_lshrrev_b32 v{vX + 1}, 5, v1")
    a(f"v_lshl_add_u32 v{vX}, v{vX + 1}, 3, v{vX}")
    a(f"s_lshl_b32 s{sT0}, s{sCp}, 7")
    a(f"s_lshr_b32 s{sT1}, s{sW}, 2")
    a(f"s_lshl_b32 s{sT1}, s{sT1}, 6")
    a(f"s_add_u32 s{sT0}, s{sT0}, s{sT1}")
    a(f"s_add_u32 s{sT0}, s{sT0}, {WS_QA}")
    for g in range(4):
        a(f"buffer_store_dwordx2 {vr(F0 + 2 * g, 2)}, v{vX}, {sr(sWS, 4)}, s{sT0} offen offset:{16 * g}")
    a.label(ldone)


def phase_attnA(a, s_task):
    sWS = SRD3
    make_srd(a, sWS, P_WS, WS_BYTES)
    sW = S_WAVE
    sHead, sQb, sT0, sT1, sKoff, sRing, sN, sMask, sEx = S_T, S_T + 1, S_T + 2, S_T + 3, S_T + 4, S_T + 5, S_T + 6, S_T + 7, S_T + 8
    a(f"s_and_b32 s{sHead}, s{s_task}, 3")
    a(f"s_lshl_b32 s{sHead}, s{sHead}, 3")
    a(f"s_add_u32 s{sHead}, s{sHead}, s{sW}")
    a(f"s_lshr_b32 s{sQb}, s{s_task}, 2")
    vL16, vCur, vNxt, vPrv, vAd, vT, vAcc = 2, 3, 4, 5, 6, 7, 10
    vE = 12
    vQ, vO, vS0, vS1, vP0, vP1, vN, FR = 16, 32, 48, 64, 80, 88, 96, 112
    a(f"v_lshlrev_b32 v{vL16}, 4, v1")
    a(f"s_lshl_b32 s{sKoff}, s{sW}, 11")
    a(f"s_add_u32 s{sKoff}, s{sKoff}, {WS_KAF}")
    a(f"s_mov_b32 s{sRing}, 0")
    a(f"s_mov_b32 s{sMask}, 0x40004000")

    def dma_groups():
        return [[f"s_lshl_b32 s{sT1}, s{sW}, 11", f"s_add_u32 m0, s{sRing}, s{sT1}", "s_nop 0",
                 f"buffer_load_dwordx4 v{vL16}, {sr(sWS, 4)}, s{sKoff} offen lds"],
                [f"buffer_load_dwordx4 v{vL16}, {sr(sWS, 4)}, s{sKoff} offen offset:1024 lds"],
                [f"s_add_u32 s{sT0}, s{sRing}, s{sT1}", f"s_add_u32 m0, s{sT0}, 16384", f"s_add_u32 s{sT0}, s{sKoff}, {WS_VAF - WS_KAF}",
                 f"buffer_load_dwordx4 v{vL16}, {sr(sWS, 4)}, s{sT0} offen lds"],
                [f"buffer_load_dwordx4 v{vL16}, {sr(sWS, 4)}, s{sT0} offen offset:1024 lds",
                 f"s_add_u32 s{sKoff}, s{sKoff}, 16384", f"s_add_u32 s{sRing}, s{sRing}, 32768", f"s_and_b32 s{sRing}, s{sRing}, 0x1ffff"]]
    a(f"v_and_b32 v{vAd}, 31, v1")
    a(f"s_lshl_b32 s{sT0}, s{sQb}, 5")
    a(f"v_add_u32 v{vAd}, s{sT0}, v{vAd}")
    a(f"s_movk_i32 s{sT0}, 1152")
    a(f"v_mul_lo_u32 v{vAd}, v{vAd}, s{sT0}")
    a(f"v_lshrrev_b32 v{vT}, 5, v1")
    a(f"v_lshl_add_u32 v{vT + 1}, v{vT}, 3, v{vAd}")
    a(f"s_mul_i32 s{sT0}, s{sHead}, 36")
    a(f"s_add_u32 s{sT0}, s{sT0}, {WS_QA}")
    a(f"buffer_load_dwordx2 {vr(vQ, 2)}, v{vT + 1}, {sr(sWS, 4)}, s{sT0} offen")
    a(f"buffer_load_dwordx2 {vr(vQ + 2, 2)}, v{vT + 1}, {sr(sWS, 4)}, s{sT0} offen offset:16")
    a(f"buffer_load_dword v{vQ + 4}, v{vAd}, {sr(sWS, 4)}, s{sT0} offen offset:32")
    for _ in range(3):
        for g in dma_groups():
            for x in g:
                a(x)
    for i in range(16):
        a(f"v_mov_b32 v{vO + i}, 0")
    for i in range(8):
        a(f"v_mov_b32 v{vP1 + i}, 0")
    for i in range(5, 8):
        a(f"v_mov_b32 v{vQ + i}, 0")
    a(f"v_mov_b32 v{vCur}, v{vL16}")
    a(f"v_mov_b32 v{vPrv}, v{vL16}")
    a(f"v_add_u32 v{vNxt}, 32768, v{vL16}")
    a(f"v_cmp_gt_u32 vcc, 32, v1")
    a("s_waitcnt vmcnt(8)")
    a("s_nop 0")
    a(f"v_cndmask_b32 v{vQ + 4}, 0, v{vQ + 4}, vcc")
    a("s_barrier")
    a(f"ds_read_b128 {vr(FR, 4)}, v{vCur}")
    a(f"ds_read_b128 {vr(FR + 4, 4)}, v{vCur} offset:1024")
    a("s_waitcnt lgkmcnt(0)")
    mfma(a, vS0, FR, vQ, "0")
    mfma(a, vS0, FR + 4, vQ + 4)
    a("s_nop 15")

    def rowmax(S):
        a(f"v_max3_f32 v{vT}, v{S}, v{S + 1}, v{S + 2}")
        for i in range(3, 15, 2):
            a(f"v_max3_f32 v{vT}, v{vT}, v{S + i}, v{S + i + 1}")
        a(f"v_max_f32 v{vT}, v{vT}, v{S + 15}")
        a(f"v_mov_b32 v{vT + 1}, v{vT}")
        a("s_nop 1")
        a(f"v_permlane32_swap_b32 v{vT}, v{vT + 1}")
        a("s_nop 1")
        a(f"v_max_f32 v{vT}, v{vT}, v{vT + 1}")
        a(f"v_add_f32 v{vT}, {f32bits(T_OFF):#x}, v{vT}")
    rowmax(vS0)
    for i in range(16):
        a(f"v_sub_f32 v{vN + i}, 0, v{vT}")
        a(f"v_sub_f32 v{vS0 + i}, v{vS0 + i}, v{vT}")
    D = 4

    def frag_addr(j, i):
        nxt = j >= 8
        j %= 8
        if i < 2:
            kb = j + 1
            if kb == 8:
                return ("NN" if nxt else vNxt, i * 1024)
            return (vNxt if nxt else vCur, kb * 2048 + i * 1024)
        kb = j - 1
        if kb < 0:
            return (vCur if nxt else vPrv, 16384 + 7 * 2048 + (i - 2) * 1024)
        return (vNxt if nxt else vCur, 16384 + kb * 2048 + (i - 2) * 1024)

    def frag_read(j, i):
        r, off = frag_addr(j, i)
        assert r != "NN"
        a(f"ds_read_b128 {vr(FR + 4 * ((4 * j + i) % 8), 4)}, v{r} offset:{off}")

    for i in range(4):
        frag_read(0, i)
    slow = []

    def sm_ops(R):
        ops = []
        for p in range(8):
            e = vE + 2 * (p & 1)
            ops.append([f"v_exp_f32 v{e}, v{R['Sc'] + 2 * p}", f"v_exp_f32 v{e + 1}, v{R['Sc'] + 2 * p + 1}"])
        return ops

    def sm_plain(R):
        for p in range(8):
            e = vE + 2 * (p & 1)
            a(f"v_exp_f32 v{e}, v{R['Sc'] + 2 * p}")
            a(f"v_exp_f32 v{e + 1}, v{R['Sc'] + 2 * p + 1}")
            a("s_nop 0")
            a(f"v_cvt_pk_bf16_f32 v{R['Pc'] + p}, v{e}, v{e + 1}")

    lLoop = a.newlabel("AA_LOOP")
    a(f"s_mov_b32 s{sN}, 0")
    a.label(lLoop)
    for j in range(8):
        R = dict(Sc=vS0, Sn=vS1, Pc=vP0, Pp=vP1) if (j & 1) == 0 else dict(Sc=vS1, Sn=vS0, Pc=vP1, Pp=vP0)
        lslow, lback = a.newlabel("AA_SLOW"), a.newlabel("AA_BACK")
        extra = {i: [] for i in range(4)}
        if j == 4:
            l0 = a.newlabel("AA_W")
            extra[0] = [f"s_cmp_lt_u32 s{sN}, 6", f"s_cbranch_scc1 {l0}", "s_waitcnt vmcnt(0)", f"{l0}:", "s_waitcnt vmcnt(4)", "s_barrier"]
        if j == 5:
            l1 = a.newlabel("AA_W")
            g = dma_groups()
            extra[0] = [f"s_cmp_ge_u32 s{sN}, 5", f"s_cbranch_scc1 {l1}"] + g[0] + g[1] + g[2] + g[3] + [f"{l1}:"]
        for i in range(4):
            if i % 2 == 0:
                a(f"s_waitcnt lgkmcnt({D - 2})")
            fr = FR + 4 * ((4 * j + i) % 8)
            if i < 2:
                mfma(a, R['Sn'], fr, vQ + 4 * i, vN if i == 0 else None)
            else:
                mfma(a, vO, fr, R['Pp'] + 4 * (i - 2))
            for x in extra[i]:
                if x.endswith(":"):
                    a.label(x[:-1])
                else:
                    a(x)
            frag_read(j + 1, i)
            for p in (2 * i, 2 * i + 1):
                e = vE + 2 * (p & 1)
                a(f"v_exp_f32 v{e}, v{R['Sc'] + 2 * p}")
                a(f"v_exp_f32 v{e + 1}, v{R['Sc'] + 2 * p + 1}")
                if p & 1:
                    e0 = vE
                    a(f"v_cvt_pk_bf16_f32 v{R['Pc'] + p - 1}, v{e0}, v{e0 + 1}")
                    a(f"v_cvt_pk_bf16_f32 v{R['Pc'] + p}, v{e}, v{e + 1}")
                    if i == 0:
                        a(f"v_or_b32 v{vAcc}, v{R['Pc'] + p - 1}, v{R['Pc'] + p}")
                    else:
                        a(f"v_or3_b32 v{vAcc}, v{vAcc}, v{R['Pc'] + p - 1}, v{R['Pc'] + p}")
        a(f"v_and_b32 v{vAcc}, s{sMask}, v{vAcc}")
        a(f"v_cmp_ne_u32 vcc, 0, v{vAcc}")
        if j == 7:
            a(f"s_add_u32 s{sN}, s{sN}, 1")
            a(f"s_add_u32 s{sT0}, s{sN}, 1")
            a(f"s_and_b32 s{sT0}, s{sT0}, 3")
            a(f"s_lshl_b32 s{sT0}, s{sT0}, 15")
            a(f"v_mov_b32 v{vPrv}, v{vCur}")
            a(f"v_mov_b32 v{vCur}, v{vNxt}")
            a(f"v_add_u32 v{vNxt}, s{sT0}, v{vL16}")
        a(f"s_cbranch_vccnz {lslow}")
        a.label(lback)
        slow.append((R, lslow, lback))
    a(f"s_cmp_lt_u32 s{sN}, 8")
    a(f"s_cbranch_scc1 {lLoop}")
    a("s_waitcnt lgkmcnt(0)")
    mfma(a, vO, FR + 8, vP1)
    mfma(a, vO, FR + 12, vP1 + 4)
    a("s_nop 15")
    a(f"v_rcp_f32 v{vT}, v{vO + 10}")
    a("s_nop 0")
    for i in range(10):
        a(f"v_mul_f32 v{vO + i}, v{vO + i}, v{vT}")
    for i in range(5):
        a(f"v_cvt_pk_bf16_f32 v{vP0 + i}, v{vO + 2 * i}, v{vO + 2 * i + 1}")
    a(f"v_lshrrev_b32 v{vT}, 5, v1")
    a(f"v_lshl_add_u32 v{vT + 1}, v{vT}, 3, v{vAd}")
    a(f"s_mul_i32 s{sT0}, s{sHead}, 36")
    a(f"s_add_u32 s{sT0}, s{sT0}, {WS_CTXA}")
    a(f"buffer_store_dwordx2 {vr(vP0, 2)}, v{vT + 1}, {sr(sWS, 4)}, s{sT0} offen")
    a(f"buffer_store_dwordx2 {vr(vP0 + 2, 2)}, v{vT + 1}, {sr(sWS, 4)}, s{sT0} offen offset:16")
    a(f"v_cmp_gt_u32 vcc, 32, v1")
    a(f"s_and_saveexec_b64 {sr(sEx, 2)}, vcc")
    a(f"buffer_store_dword v{vP0 + 4}, v{vAd}, {sr(sWS, 4)}, s{sT0} offen offset:32")
    a(f"s_mov_b64 exec, {sr(sEx, 2)}")
    lEnd = a.newlabel("AA_END")
    a(f"s_branch {lEnd}")
    for (R, lab, back) in slow:
        a.label(lab)
        a("s_nop 15")
        rowmax(R['Sc'])
        a(f"v_max_f32 v{vT}, 0, v{vT}")
        for i in range(16):
            a(f"v_sub_f32 v{vN + i}, v{vN + i}, v{vT}")
            a(f"v_sub_f32 v{R['Sc'] + i}, v{R['Sc'] + i}, v{vT}")
            a(f"v_sub_f32 v{R['Sn'] + i}, v{R['Sn'] + i}, v{vT}")
        a(f"v_exp_f32 v{vT + 1}, -v{vT}")
        a("s_nop 0")
        for i in range(16):
            a(f"v_mul_f32 v{vO + i}, v{vO + i}, v{vT + 1}")
        sm_plain(R)
        a("s_nop 1")
        a(f"s_branch {back}")
    a.label(lEnd)
```

```python
from gen import *
from attnb import *
from parta import *
from outp import *
def make():
    return build([("kv_kernel", 256, 512, 131072, lambda a: phase_kv(a, 2)),
                  ("aproj_kernel", 160, 512, 155648, lambda a: phase_aproj(a, 2)),
                  ("attb_kernel", 256, 512, 147456, lambda a: phase_attnB(a, 2)),
                  ("atta_kernel", 256, 512, 131072, lambda a: phase_attnA(a, 2)),
                  ("outp_kernel", 240, 512, 122880, lambda a: phase_out(a, 2)),
                  ("red_kernel", 288, 512, 0, lambda a: phase_reduce(a, 2))])
```

```python
import sys, math, struct

NAME = "concat_heads__grouped_kv_mqa__compressed_kv_cla__prompt"

WS_KF = 0
WS_VF = 16 << 20
WS_CTXB = 32 << 20
WS_QA = 48 << 20
WS_KAF = 52 << 20
WS_VAF = 53 << 20
WS_CTXA = 54 << 20
WS_PART = 64 << 20
WS_BYTES = 268435456

LOG2E = 1.4426950408889634
C_A = (18 ** -0.5) * LOG2E
C_B = (128 ** -0.5) * LOG2E
T_OFF = 64.0


def f32bits(x):
    return struct.unpack("<I", struct.pack("<f", x))[0]


class Asm:
    def __init__(self):
        self.lines = []
        self.nlab = 0

    def __call__(self, s):
        for l in s.split("\n"):
            l = l.strip()
            if l:
                self.lines.append("    " + l)

    def label(self, l):
        self.lines.append(l + ":")

    def newlabel(self, base="L"):
        self.nlab += 1
        return f"{base}_{self.nlab}"

    def raw(self, s):
        self.lines.append(s)

    def text(self):
        return "\n".join(self.lines) + "\n"


def vr(b, n=1):
    return f"v{b}" if n == 1 else f"v[{b}:{b + n - 1}]"


def sr(b, n=1):
    return f"s{b}" if n == 1 else f"s[{b}:{b + n - 1}]"


S_PTR = 16
P_AX, P_AWQ, P_AWK, P_AWV, P_AWO, P_BX, P_BC, P_BWQ, P_BWUK, P_BWUV, P_BWO, P_OUT, P_DBG, P_WS = [S_PTR + 2 * i for i in range(14)]
SRD0, SRD1, SRD2, SRD3, SRD4 = 44, 48, 52, 56, 60
S_WAVE = 64
S_T = 66


def load_ptrs(a):
    a("s_load_dwordx16 s[16:31], s[0:1], 0")
    a("s_load_dwordx8 s[32:39], s[0:1], 64")
    a("s_load_dwordx4 s[40:43], s[0:1], 96")


def make_srd(a, srd, ptr, nbytes):
    a(f"s_mov_b32 s{srd}, s{ptr}")
    a(f"s_and_b32 s{srd + 1}, s{ptr + 1}, 0xffff")
    a(f"s_mov_b32 s{srd + 2}, {nbytes}")
    a(f"s_mov_b32 s{srd + 3}, 0x00020000")


def mfma(a, d, A, B, c=None):
    c = d if c is None else c
    cs = "0" if c == "0" else vr(c, 16)
    a(f"v_mfma_f32_32x32x16_bf16 {vr(d, 16)}, {vr(A, 4)}, {vr(B, 4)}, {cs}")


STAMPS = False
WS_STAMP = 200 << 20
S_STAMP = 88
def stamp(a, i, real=False):
    if STAMPS:
        a(f"{'s_memrealtime' if real else 's_memtime'} {sr(S_STAMP + 2 * i, 2)}")
def stamp_flush(a, n, sWS):
    if not STAMPS: return
    a("s_waitcnt lgkmcnt(0)")
    a(f"s_lshl_b32 s{S_T}, s2, 3")
    a(f"s_add_u32 s{S_T}, s{S_T}, s{S_WAVE}")
    a(f"s_lshl_b32 s{S_T}, s{S_T}, 5")
    a(f"s_add_u32 s{S_T}, s{S_T}, {WS_STAMP}")
    a("v_mov_b32 v2, 0")
    for i in range(n):
        a(f"v_mov_b32 v3, s{S_STAMP + 2 * i}")
        a(f"buffer_store_dword v3, v2, {sr(sWS, 4)}, s{S_T} offen offset:{4 * i}")

def kernel_begin(a, name):
    a.raw(f".globl {name}")
    a.raw(".p2align 8")
    a.raw(f".type {name},@function")
    a.label(name)


def kernel_desc(name, nvgpr=256, nsgpr=102):
    acc = (nvgpr + 3) // 4 * 4
    return f""".p2align 6
.amdhsa_kernel {name}
  .amdhsa_next_free_vgpr {nvgpr}
  .amdhsa_next_free_sgpr {nsgpr}
  .amdhsa_accum_offset {acc}
  .amdhsa_group_segment_fixed_size 0
  .amdhsa_kernarg_size 112
  .amdhsa_user_sgpr_count 2
  .amdhsa_user_sgpr_kernarg_segment_ptr 1
  .amdhsa_system_sgpr_workgroup_id_x 1
.end_amdhsa_kernel
"""


def common_entry(a, ntasks, done_label):
    a(f"s_cmp_ge_u32 s2, {ntasks}")
    a(f"s_cbranch_scc1 {done_label}")
    load_ptrs(a)
    a("v_lshrrev_b32 v2, 6, v0")
    a("v_and_b32 v1, 63, v0")
    a("s_nop 0")
    a(f"v_readfirstlane_b32 s{S_WAVE}, v2")
    a("s_waitcnt lgkmcnt(0)")


def phase_kv(a, s_task):
    sC, sWK, sWV, sWS = SRD0, SRD1, SRD2, SRD3
    make_srd(a, sC, P_BC, 2048 * 512 * 2)
    make_srd(a, sWK, P_BWUK, 512 * 4096 * 2)
    make_srd(a, sWV, P_BWUV, 512 * 4096 * 2)
    make_srd(a, sWS, P_WS, WS_BYTES)
    sHead, sRb, sW, sT0, sT1, sStage, sBuf, sAoff, sWoff, sM0a, sM0w = [S_T + i for i in range(11)]
    a(f"s_and_b32 s{sHead}, s{s_task}, 31")
    a(f"s_lshr_b32 s{sRb}, s{s_task}, 5")
    sW = S_WAVE
    vA0, vA1, vW = 2, 3, 4
    vRA = 5
    vRW = 9
    vT = 11
    F0, F1 = 16, 40
    ACC = 128
    a(f"v_lshrrev_b32 v{vT}, 3, v1")
    a(f"s_lshl_b32 s{sT0}, s{sRb}, 8")
    a(f"s_lshl_b32 s{sT1}, s{sW}, 5")
    a(f"s_add_u32 s{sT0}, s{sT0}, s{sT1}")
    a(f"v_add_u32 v{vT}, s{sT0}, v{vT}")
    a(f"v_lshlrev_b32 v{vT}, 10, v{vT}")
    a(f"v_lshrrev_b32 v{vT + 1}, 4, v1")
    a(f"v_and_b32 v{vT + 2}, 7, v1")
    a(f"v_xor_b32 v{vT + 3}, v{vT + 2}, v{vT + 1}")
    a(f"v_lshl_add_u32 v{vA0}, v{vT + 3}, 4, v{vT}")
    a(f"v_xor_b32 v{vT + 3}, 4, v{vT + 3}")
    a(f"v_lshl_add_u32 v{vA1}, v{vT + 3}, 4, v{vT}")
    a(f"v_add_u32 v{vA1}, 8192, v{vA1}")
    a(f"v_and_b32 v{vT + 2}, 15, v1")
    a(f"v_lshlrev_b32 v{vT + 3}, 2, v{vT + 1}")
    a(f"v_xor_b32 v{vT + 2}, v{vT + 2}, v{vT + 3}")
    a(f"v_lshlrev_b32 v{vT + 2}, 4, v{vT + 2}")
    a(f"v_lshl_add_u32 v{vW}, v{vT + 1}, 13, v{vT + 2}")
    a(f"s_lshl_b32 s{sT0}, s{sHead}, 8")
    a(f"v_add_u32 v{vW}, s{sT0}, v{vW}")
    a(f"v_and_b32 v{vT}, 31, v1")
    a(f"s_and_b32 s{sT0}, s{sW}, 1")
    a(f"s_lshl_b32 s{sT0}, s{sT0}, 7")
    a(f"v_add_u32 v{vT + 1}, s{sT0}, v{vT}")
    a(f"v_lshlrev_b32 v{vT + 1}, 7, v{vT + 1}")
    a(f"v_bfe_u32 v{vT + 2}, v1, 1, 3")
    a(f"v_lshrrev_b32 v{vT + 3}, 5, v1")
    for t in range(4):
        a(f"v_add_u32 v{vT + 4}, {2 * t}, v{vT + 3}")
        a(f"v_xor_b32 v{vT + 4}, v{vT + 4}, v{vT + 2}")
        a(f"v_lshl_add_u32 v{vRA + t}, v{vT + 4}, 4, v{vT + 1}")
    a(f"v_bfe_u32 v{vT}, v1, 2, 2")
    a(f"v_lshrrev_b32 v{vT + 1}, 5, v1")
    a(f"v_lshl_add_u32 v{vT + 1}, v{vT + 1}, 3, v{vT}")
    a(f"v_lshlrev_b32 v{vT + 1}, 8, v{vT + 1}")
    a(f"v_bfe_u32 v{vT + 2}, v1, 4, 1")
    a(f"v_bfe_u32 v{vT + 3}, v1, 1, 1")
    a(f"v_lshl_add_u32 v{vT + 2}, v{vT + 2}, 1, v{vT + 3}")
    a(f"v_lshl_add_u32 v{vT + 1}, v{vT + 2}, 4, v{vT + 1}")
    a(f"v_and_b32 v{vT + 2}, 1, v1")
    a(f"v_lshl_add_u32 v{vT + 1}, v{vT + 2}, 3, v{vT + 1}")
    a(f"s_lshr_b32 s{sT0}, s{sW}, 2")
    a(f"s_lshl_b32 s{sT0}, s{sT0}, 14")
    a(f"s_add_u32 s{sT0}, s{sT0}, 32768")
    a(f"v_add_u32 v{vT + 1}, s{sT0}, v{vT + 1}")
    a(f"s_and_b32 s{sT0}, s{sW}, 2")
    for c in range(2):
        a(f"s_add_u32 s{sT1}, s{sT0}, {c}")
        a(f"v_xor_b32 v{vT + 2}, s{sT1}, v{vT}")
        a(f"v_lshl_add_u32 v{vRW + c}, v{vT + 2}, 6, v{vT + 1}")
    a(f"s_lshl_b32 s{sM0a}, s{sW}, 12")
    a(f"s_lshl_b32 s{sM0w}, s{sW}, 11")
    a(f"s_add_u32 s{sM0w}, s{sM0w}, 32768")
    a(f"s_lshl_b32 s{sWoff}, s{sW}, 16")
    a(f"s_mov_b32 s{sAoff}, 0")

    def issue_dma(bufreg_or_const):
        b = bufreg_or_const
        for j in range(4):
            a(f"s_add_u32 m0, s{sM0a}, {b + j * 1024}")
            if j >= 2:
                a(f"s_add_u32 s{sT0}, s{sAoff}, 16384")
                so = sT0
            else:
                a("s_nop 0")
                so = sAoff
            a(f"buffer_load_dwordx4 v{vA0 + (j & 1)}, {sr(sC, 4)}, s{so} offen lds")
        for j in range(2):
            a(f"s_add_u32 s{sT0}, s{sWoff}, {j * 32768}")
            a(f"s_add_u32 m0, s{sM0w}, {b + j * 1024}")
            a("s_nop 0")
            a(f"buffer_load_dwordx4 v{vW}, {sr(sWK, 4)}, s{sT0} offen lds")
            a(f"s_add_u32 m0, s{sM0w}, {b + 16384 + j * 1024}")
            a("s_nop 0")
            a(f"buffer_load_dwordx4 v{vW}, {sr(sWV, 4)}, s{sT0} offen lds")
        a(f"s_add_u32 s{sAoff}, s{sAoff}, 128")
        a(f"s_add_u32 s{sWoff}, s{sWoff}, 524288")

    def reads(F, t):
        for r in range(4):
            a(f"ds_read_b128 {vr(F + 4 * r, 4)}, v{vRA + t} offset:{r * 4096}")
        for c in range(2):
            for j in range(2):
                a(f"ds_read_b64_tr_b16 {vr(F + 16 + 4 * c + 2 * j, 2)}, v{vRW + c} offset:{(16 * t + 4 * j) * 256}")

    def toggle():
        for t in range(4):
            a(f"v_xor_b32 v{vRA + t}, 0x10000, v{vRA + t}")
        for c in range(2):
            a(f"v_xor_b32 v{vRW + c}, 0x10000, v{vRW + c}")

    def mfmas(F, kvar, first):
        for r in range(4):
            for c in range(2):
                d = ACC + 16 * (2 * r + c)
                A, B = (F + 16 + 4 * c, F + 4 * r) if kvar else (F + 4 * r, F + 16 + 4 * c)
                mfma(a, d, A, B, "0" if first else None)

    stamp(a, 0)
    stamp(a, 5, True)
    issue_dma(0)
    issue_dma(65536)
    a("s_waitcnt vmcnt(8)")
    a("s_barrier")
    stamp(a, 1)
    reads(F0, 0)
    lV, lEnd = a.newlabel("KV_V"), a.newlabel("KV_END")
    a(f"s_cmp_ge_u32 s{sW}, 4")
    a(f"s_cbranch_scc1 {lV}")
    NST = 8
    for kvar in (True, False):
        if not kvar:
            a.label(lV)
        for s in range(NST):
            buf = (s & 1) * 65536
            reads(F1, 1)
            a("s_waitcnt lgkmcnt(8)")
            mfmas(F0, kvar, s == 0)
            reads(F0, 2)
            a("s_waitcnt lgkmcnt(8)")
            mfmas(F1, kvar, False)
            reads(F1, 3)
            a("s_waitcnt lgkmcnt(8)")
            mfmas(F0, kvar, False)
            if s < NST - 1:
                a("s_waitcnt vmcnt(0) lgkmcnt(0)")
                a("s_barrier")
                if s + 2 < NST:
                    issue_dma(buf)
                toggle()
                reads(F0, 0)
            else:
                a("s_waitcnt lgkmcnt(0)")
            mfmas(F1, kvar, False)
        if kvar:
            a(f"s_branch {lEnd}")
    a.label(lEnd)
    stamp(a, 2)
    a(f"s_lshl_b32 s{sT0}, s{sHead}, 6")
    a(f"s_lshl_b32 s{sT1}, s{sRb}, 3")
    a(f"s_add_u32 s{sT0}, s{sT0}, s{sT1}")
    a(f"s_and_b32 s{sT1}, s{sW}, 1")
    a(f"s_lshl_b32 s{sT1}, s{sT1}, 2")
    a(f"s_add_u32 s{sT0}, s{sT0}, s{sT1}")
    a(f"s_lshl_b32 s{sT0}, s{sT0}, 3")
    a(f"s_and_b32 s{sT1}, s{sW}, 2")
    a(f"s_lshl_b32 s{sT1}, s{sT1}, 1")
    a(f"s_add_u32 s{sT0}, s{sT0}, s{sT1}")
    a(f"s_lshl_b32 s{sT0}, s{sT0}, 10")
    a(f"s_lshr_b32 s{sT1}, s{sW}, 2")
    a(f"s_lshl_b32 s{sT1}, s{sT1}, 24")
    a(f"s_add_u32 s{sT0}, s{sT0}, s{sT1}")
    a(f"v_lshlrev_b32 v{vT}, 4, v1")
    a("s_nop 7")
    a("s_nop 7")
    for r in range(4):
        a(f"s_add_u32 s{sT1}, s{sT0}, {r * 8192}")
        for c in range(2):
            d = ACC + 16 * (2 * r + c)
            o = F0 + 8 * ((2 * r + c) & 3)
            for i in range(8):
                a(f"v_cvt_pk_bf16_f32 v{o + i}, v{d + 2 * i}, v{d + 2 * i + 1}")
            a(f"buffer_store_dwordx4 {vr(o, 4)}, v{vT}, {sr(sWS, 4)}, s{sT1} offen offset:{(2 * c) * 1024}")
            a(f"buffer_store_dwordx4 {vr(o + 4, 4)}, v{vT}, {sr(sWS, 4)}, s{sT1} offen offset:{(2 * c + 1) * 1024}")
    stamp(a, 3)
    a("s_waitcnt vmcnt(0)")
    stamp(a, 4)
    stamp(a, 6, True)
    stamp_flush(a, 7, sWS)


def build(kernels):
    a = Asm()
    hdr = []
    for (name, grid, block, lds, fn) in kernels:
        hdr.append(f"; @launch kernel={name} grid=({grid},1,1) block=({block},1,1) lds={lds}")
    a.raw('.amdgcn_target "amdgcn-amd-amdhsa--gfx950"')
    a.raw(".text")
    seen = []
    for (name, grid, block, lds, fn) in kernels:
        if name in seen:
            continue
        seen.append(name)
        kernel_begin(a, name)
        done = a.newlabel("DONE")
        common_entry(a, grid, done)
        fn(a)
        a.label(done)
        a("s_endpgm")
    a.raw('.section .rodata,"a"')
    for name in seen:
        a.raw(kernel_desc(name))
    return "\n".join(hdr) + "\n" + a.text()


if __name__ == "__main__":
    import phases, gen
    if len(sys.argv) > 2 and sys.argv[2] == "stamps":
        gen.STAMPS = True
    txt = phases.make()
    out = sys.argv[1] if len(sys.argv) > 1 else f"cdna_kernels/{NAME}.s"
    ref = open(f"cdna_kernels/{NAME}.s.ref").read().split("; Override launch")[0]
    open(out, "w").write(ref + txt)
    print("wrote", out, len(txt), "bytes")
```

```python
from gen import *
import gen
NEG_BIG = 0xff7fffff


def attnB_kv_prologue(a, vL16, sT0, sT1, sT2, stages=(0, 1, 2)):
    sWS = SRD3
    a(f"s_and_b32 s{sT1}, s{S_WAVE}, 3")
    a(f"s_lshl_b32 s{sT1}, s{sT1}, 12")
    a(f"s_and_b32 s{sT2}, s2, 31")
    a(f"s_lshl_b32 s{sT2}, s{sT2}, 19")
    a(f"s_add_u32 s{sT2}, s{sT2}, s{sT1}")
    for n in stages:
        a(f"s_add_u32 m0, s{sT1}, {n * 32768}")
        a(f"s_add_u32 s{sT0}, s{sT2}, {WS_KF + n * 16384}")
        for j in range(4):
            a(f"buffer_load_dwordx4 v{vL16}, {sr(sWS, 4)}, s{sT0} offen offset:{j * 1024} lds")
        a(f"s_add_u32 m0, s{sT1}, {n * 32768 + 16384}")
        a(f"s_add_u32 s{sT0}, s{sT2}, {WS_VF + max(n - 1, 0) * 16384}")
        for j in range(4):
            a(f"buffer_load_dwordx4 v{vL16}, {sr(sWS, 4)}, s{sT0} offen offset:{j * 1024} lds")


def attnB_main(a, idle_hook=None):
    sWS = SRD3
    sW = S_WAVE
    (sHead, sI, sT0, sT1, sUd, sNT, sN, sU, sKoff, sVoff, sRing, sClamp, sQb, sThr, sPrev, sNS, sE1, sE2, sW3) = [S_T + i for i in range(19)]
    a(f"s_and_b32 s{sHead}, s2, 31")
    a(f"s_lshr_b32 s{sI}, s2, 5")
    a(f"s_lshl_b32 s{sT0}, s{sI}, 2")
    a(f"s_add_u32 s{sT1}, s{sT0}, s{sW}")
    a(f"s_sub_u32 s{sQb}, 67, s{sT1}")
    a(f"s_cmp_lt_u32 s{sW}, 4")
    a(f"s_cselect_b32 s{sQb}, s{sT1}, s{sQb}")
    a(f"s_cselect_b32 s{sPrev}, 0, 8")
    a(f"s_mov_b32 s{sUd}, s{sQb}")
    a(f"s_lshl_b32 s{sT0}, s{sI}, 1")
    a(f"s_sub_u32 s{sNT}, 32, s{sT0}")
    a(f"s_add_u32 s{sNS}, s{sT0}, 3")
    vL16, vCur, vNxt = 2, 3, 4
    vT = 5
    vL, vTs, vTmp = 8, 9, 10
    vE = 11
    vTq = 15
    vQ, vO, vS0, vS1, vP0, vP1, vN, FR = 16, 48, 112, 128, 144, 152, 160, 192
    a(f"v_lshlrev_b32 v{vL16}, 4, v1")
    a(f"s_lshl_b32 s{sKoff}, s{sHead}, 19")
    a(f"s_add_u32 s{sVoff}, s{sKoff}, {WS_VF + 2 * 16384}")
    a(f"s_add_u32 s{sKoff}, s{sKoff}, {WS_KF + 3 * 16384}")
    a(f"s_mov_b32 s{sRing}, {3 * 32768}")
    for i in range(64):
        a(f"v_mov_b32 v{vO + i}, 0")
    for i in range(16):
        a(f"v_mov_b32 v{vN + i}, 0")
    a(f"v_mov_b32 v{vL}, 0")
    for i in range(16):
        a(f"v_mov_b32 v{vS1 + i}, {NEG_BIG:#x}")
    for i in range(8):
        a(f"v_mov_b32 v{vP0 + i}, 0")
    a(f"v_and_b32 v{vTq}, 31, v1")
    a(f"v_lshrrev_b32 v{vT}, 5, v1")
    a(f"v_lshlrev_b32 v{vT}, 2, v{vT}")
    a(f"v_sub_u32 v{vTq}, v{vTq}, v{vT}")
    a(f"v_mov_b32 v{vCur}, v{vL16}")
    a(f"v_add_u32 v{vNxt}, 32768, v{vL16}")
    a("s_waitcnt vmcnt(8) lgkmcnt(0)")
    a("s_barrier")
    l = a.newlabel("BP")
    a(f"s_cmp_lt_u32 s{sW}, 4")
    a(f"s_cbranch_scc1 {l}")
    attnB_kv_prologue(a, vL16, sT0, sT1, sU, (2,))
    a.label(l)
    stamp(a, 3)
    a(f"s_mov_b32 s{sN}, 0")

    SEQ = [('Q', 0), ('Q', 1), ('P', 0, 0), ('Q', 2), ('P', 1, 0), ('Q', 3), ('P', 2, 0), ('Q', 4), ('P', 3, 0), ('Q', 5),
           ('P', 0, 1), ('Q', 6), ('Q', 7), ('P', 1, 1), ('P', 2, 1), ('P', 3, 1)]
    D = 6

    def dma_ops(wide):
        sh = 12 if wide else 11
        n = 4 if wide else 2
        g = []
        g.append([f"s_lshl_b32 s{sT1}, s{sW}, {sh}", f"s_add_u32 m0, s{sRing}, s{sT1}", f"s_add_u32 s{sT0}, s{sKoff}, s{sT1}",
                  f"buffer_load_dwordx4 v{vL16}, {sr(sWS, 4)}, s{sT0} offen lds"])
        for j in range(1, n):
            g.append([f"buffer_load_dwordx4 v{vL16}, {sr(sWS, 4)}, s{sT0} offen offset:{j * 1024} lds"])
        g.append([f"s_add_u32 s{sT0}, s{sRing}, s{sT1}", f"s_add_u32 m0, s{sT0}, 16384", f"s_add_u32 s{sT0}, s{sVoff}, s{sT1}",
                  f"buffer_load_dwordx4 v{vL16}, {sr(sWS, 4)}, s{sT0} offen lds"])
        for j in range(1, n):
            g.append([f"buffer_load_dwordx4 v{vL16}, {sr(sWS, 4)}, s{sT0} offen offset:{j * 1024} lds"])
        return g

    def kv_dma(wide):
        for g in dma_ops(wide):
            for x in g:
                a(x)

    def kv_advance():
        a(f"s_add_u32 s{sKoff}, s{sKoff}, 16384")
        a(f"s_add_u32 s{sVoff}, s{sVoff}, 16384")
        a(f"s_add_u32 s{sRing}, s{sRing}, 32768")
        a(f"s_and_b32 s{sRing}, s{sRing}, 0x1ffff")

    def frag_read(par, k, nxt):
        e = SEQ[k]
        off = (par * 8192 + e[1] * 1024) if e[0] == 'Q' else (16384 + par * 8192 + (e[1] * 2 + e[2]) * 1024)
        a(f"ds_read_b128 {vr(FR + 4 * (k % 8), 4)}, v{vNxt if nxt else vCur} offset:{off}")

    def sync_dma():
        l4, l8, lb = a.newlabel("W"), a.newlabel("W"), a.newlabel("W")
        a(f"s_cmp_eq_u32 s{sPrev}, 4")
        a(f"s_cbranch_scc1 {l4}")
        a(f"s_cmp_eq_u32 s{sPrev}, 8")
        a(f"s_cbranch_scc1 {l8}")
        a("s_waitcnt vmcnt(0)")
        a.label(l4)
        a("s_waitcnt vmcnt(4)")
        a.label(l8)
        a("s_waitcnt vmcnt(8)")
        a("s_barrier")
        l2, lw = a.newlabel("W"), a.newlabel("W")
        a(f"s_mov_b32 s{sPrev}, 0")
        a(f"s_add_u32 s{sT0}, s{sN}, 3")
        a(f"s_cmp_gt_u32 s{sT0}, s{sNT}")
        a(f"s_cbranch_scc1 {l2}")
        a(f"s_cmp_eq_u32 s{sT0}, s{sNT}")
        a(f"s_cselect_b32 s{sT0}, 16384, 0")
        a(f"s_sub_u32 s{sKoff}, s{sKoff}, s{sT0}")
        a(f"s_cmp_ge_u32 s{sN}, s{sNS}")
        a(f"s_cbranch_scc1 {lw}")
        kv_dma(False)
        a(f"s_mov_b32 s{sPrev}, 4")
        a(f"s_branch {lb}")
        a.label(lw)
        a(f"s_cmp_ge_u32 s{sW}, 4")
        a(f"s_cbranch_scc1 {lb}")
        kv_dma(True)
        a(f"s_mov_b32 s{sPrev}, 8")
        a.label(lb)
        kv_advance()
        a.label(l2)

    def regs(par):
        if par == 0:
            return dict(Sn=vS0, Sc=vS1, Pc=vP1, Pp=vP0)
        return dict(Sn=vS1, Sc=vS0, Pc=vP0, Pp=vP1)

    def sm_plain(R):
        for p in range(8):
            e = vE + 2 * (p & 1)
            a(f"v_exp_f32 v{e}, v{R['Sc'] + 2 * p}")
            a(f"v_exp_f32 v{e + 1}, v{R['Sc'] + 2 * p + 1}")
            a("s_nop 0")
            if p == 0:
                a(f"v_add_f32 v{vTs}, v{e}, v{e + 1}")
            else:
                a(f"v_add_f32 v{vTmp}, v{e}, v{e + 1}")
                a(f"v_add_f32 v{vTs}, v{vTs}, v{vTmp}")
            a(f"v_cvt_pk_bf16_f32 v{R['Pc'] + p}, v{e}, v{e + 1}")

    def slow_path(R, lab, back):
        a.label(lab)
        a("s_nop 15")
        Sc, Sn = R['Sc'], R['Sn']
        a(f"v_max3_f32 v{vT}, v{Sc}, v{Sc + 1}, v{Sc + 2}")
        for i in range(3, 15, 2):
            a(f"v_max3_f32 v{vT}, v{vT}, v{Sc + i}, v{Sc + i + 1}")
        a(f"v_max_f32 v{vT}, v{vT}, v{Sc + 15}")
        a(f"v_mov_b32 v{vT + 1}, v{vT}")
        a("s_nop 1")
        a(f"v_permlane32_swap_b32 v{vT}, v{vT + 1}")
        a("s_nop 1")
        a(f"v_max_f32 v{vT}, v{vT}, v{vT + 1}")
        a(f"v_add_f32 v{vT}, {f32bits(T_OFF):#x}, v{vT}")
        a(f"v_max_f32 v{vT}, s{sClamp}, v{vT}")
        for i in range(16):
            a(f"v_sub_f32 v{vN + i}, v{vN + i}, v{vT}")
            a(f"v_sub_f32 v{Sc + i}, v{Sc + i}, v{vT}")
            a(f"v_sub_f32 v{Sn + i}, v{Sn + i}, v{vT}")
        l1 = a.newlabel("SLOWF")
        a(f"s_cmp_lg_u32 s{sClamp}, 0")
        a(f"s_cbranch_scc1 {l1}")
        a(f"v_exp_f32 v{vT + 1}, -v{vT}")
        a("s_nop 0")
        for i in range(64):
            a(f"v_mul_f32 v{vO + i}, v{vO + i}, v{vT + 1}")
        a(f"v_mul_f32 v{vL}, v{vL}, v{vT + 1}")
        a.label(l1)
        a(f"s_mov_b32 s{sClamp}, 0")
        a(f"s_mov_b32 s{sThr}, 1.0")
        sm_plain(R)
        a(f"s_branch {back}")

    slow_blocks = []

    def full_slot(par, mode="generic"):
        R = regs(par)
        lslow, lback = a.newlabel("SLOW"), a.newlabel("BACK")
        extra = {k: [] for k in range(16)}
        if par == 1 and mode != "generic":
            extra[8] = ["s_waitcnt vmcnt(4)" if mode == "dma" else "s_waitcnt vmcnt(0)", "s_barrier"]
            if mode == "dma":
                for i, g in enumerate(dma_ops(False)):
                    extra[9 + i] += g
            extra[13] += [f"s_add_u32 s{sKoff}, s{sKoff}, 16384", f"s_add_u32 s{sVoff}, s{sVoff}, 16384"]
            extra[14] += [f"s_add_u32 s{sRing}, s{sRing}, 32768", f"s_and_b32 s{sRing}, s{sRing}, 0x1ffff",
                          f"s_add_u32 s{sN}, s{sN}, 1"]
            extra[15] += [f"s_add_u32 s{sT0}, s{sN}, 1", f"s_and_b32 s{sT0}, s{sT0}, 3", f"s_lshl_b32 s{sT0}, s{sT0}, 15"]
        for k in range(16):
            if (k & 1) == 0:
                a(f"s_waitcnt lgkmcnt({D - 2})")
            e = SEQ[k]
            fr = FR + 4 * (k % 8)
            if e[0] == 'Q':
                mfma(a, R['Sn'], fr, vQ + 4 * e[1], vN if e[1] == 0 else None)
            else:
                mfma(a, vO + 16 * e[1], fr, R['Pp'] + 4 * e[2])
            if par == 1 and k == 8 and mode == "generic":
                sync_dma()
            for x in extra[k]:
                a(x)
            kk = k + D
            if kk < 16:
                frag_read(par, kk, False)
            else:
                frag_read(1 - par, kk - 16, par == 1)
            p = k >> 1
            ee = vE + 2 * (p & 1)
            if (k & 1) == 0:
                a(f"v_exp_f32 v{ee}, v{R['Sc'] + 2 * p}")
                a(f"v_exp_f32 v{ee + 1}, v{R['Sc'] + 2 * p + 1}")
            else:
                if p == 0:
                    a(f"v_add_f32 v{vTs}, v{ee}, v{ee + 1}")
                else:
                    a(f"v_add_f32 v{vTmp}, v{ee}, v{ee + 1}")
                    a(f"v_add_f32 v{vTs}, v{vTs}, v{vTmp}")
                a(f"v_cvt_pk_bf16_f32 v{R['Pc'] + p}, v{ee}, v{ee + 1}")
        a(f"v_cmp_lt_f32 vcc, s{sThr}, v{vTs}")
        if par == 1 and mode != "generic":
            a(f"v_mov_b32 v{vCur}, v{vNxt}")
            a(f"v_add_u32 v{vNxt}, s{sT0}, v{vL16}")
        a(f"s_cbranch_vccnz {lslow}")
        a.label(lback)
        a(f"v_add_f32 v{vL}, v{vL}, v{vTs}")
        slow_blocks.append((R, lslow, lback))

    def epilogue():
        a("s_nop 15")
        a(f"v_mov_b32 v{vT}, v{vL}")
        a(f"v_mov_b32 v{vT + 1}, v{vL}")
        a("s_nop 1")
        a(f"v_permlane32_swap_b32 v{vT}, v{vT + 1}")
        a("s_nop 1")
        a(f"v_add_f32 v{vT}, v{vT}, v{vT + 1}")
        a(f"v_rcp_f32 v{vT}, v{vT}")
        a("s_nop 0")
        for i in range(64):
            a(f"v_mul_f32 v{vO + i}, v{vO + i}, v{vT}")
        for i in range(32):
            a(f"v_cvt_pk_bf16_f32 v{vQ + i}, v{vO + 2 * i}, v{vO + 2 * i + 1}")
        a(f"s_lshl_b32 s{sT0}, s{sQb}, 8")
        a(f"s_lshl_b32 s{sT1}, s{sHead}, 3")
        a(f"s_add_u32 s{sT0}, s{sT0}, s{sT1}")
        a(f"s_lshl_b32 s{sT0}, s{sT0}, 10")
        a(f"s_add_u32 s{sT0}, s{sT0}, {WS_CTXB}")
        a(f"s_add_u32 s{sT1}, s{sT0}, 4096")
        for t in range(8):
            a(f"buffer_store_dwordx4 {vr(vQ + 4 * t, 4)}, v{vL16}, {sr(sWS, 4)}, s{sT0 if t < 4 else sT1} offen offset:{(t & 3) * 1024}{gen.CTX_FLAGS}")

    a(f"s_mov_b32 s{sClamp}, {NEG_BIG:#x}")
    a(f"s_mov_b32 s{sThr}, 1.0")
    for k in range(D):
        frag_read(0, k, False)
    lLoop, lExit = a.newlabel("ATT_LOOP"), a.newlabel("ATT_EXIT")
    lS1, lS2, lGen = a.newlabel("STEADY1"), a.newlabel("STEADY2"), a.newlabel("GENST")
    a(f"s_lshr_b32 s{sE2}, s{sUd}, 1")
    a(f"s_min_u32 s{sE1}, s{sE2}, s{sNS}")
    a(f"s_sub_u32 s{sT0}, s{sNT}, 3")
    a(f"s_min_u32 s{sE1}, s{sE1}, s{sT0}")
    a(f"s_branch {lGen}")
    a.label(lS1)
    full_slot(0, "dma")
    full_slot(1, "dma")
    a(f"s_cmp_lt_u32 s{sN}, s{sE1}")
    a(f"s_cbranch_scc1 {lS1}")
    a(f"s_mov_b32 s{sPrev}, 4")
    a(f"s_branch {lLoop}")
    a.label(lS2)
    full_slot(0, "nodma")
    full_slot(1, "nodma")
    a(f"s_cmp_lt_u32 s{sN}, s{sE2}")
    a(f"s_cbranch_scc1 {lS2}")
    a(f"s_mov_b32 s{sPrev}, 0")
    a.label(lLoop)
    a(f"s_cmp_lt_u32 s{sN}, s{sE1}")
    a(f"s_cbranch_scc1 {lS1}")
    a(f"s_cmp_lt_u32 s{sN}, s{sNS}")
    a(f"s_cbranch_scc1 {lGen}")
    a(f"s_cmp_lt_u32 s{sN}, s{sE2}")
    a(f"s_cbranch_scc1 {lS2}")
    a.label(lGen)
    for par in range(2):
        lsp, lgo, li, ln = a.newlabel("SPEC"), a.newlabel("GO"), a.newlabel("IDLE"), a.newlabel("NEXT")
        a(f"s_lshl_b32 s{sU}, s{sN}, 1")
        if par == 0:
            a(f"s_sub_i32 s{sU}, s{sU}, 1")
        a(f"s_add_i32 s{sT0}, s{sU}, 2")
        a(f"s_cmp_gt_i32 s{sT0}, s{sUd}")
        a(f"s_cbranch_scc1 {lsp}")
        if par == 1:
            a(f"s_cmp_eq_u32 s{sU}, 0")
            a(f"s_cbranch_scc1 {lsp}")
        a.label(lgo)
        full_slot(par)
        a(f"s_cmp_le_i32 s{sU}, s{sUd}")
        a(f"s_cbranch_scc1 {ln}")
        epilogue()
        a(f"s_branch {ln}")
        a.label(lsp)
        a(f"s_sub_i32 s{sT0}, s{sU}, 1")
        a(f"s_cmp_gt_i32 s{sT0}, s{sUd}")
        a(f"s_cbranch_scc1 {li}")
        lz = a.newlabel("SP")
        a(f"s_cmp_lg_u32 s{sU}, 0")
        a(f"s_cbranch_scc1 {lz}")
        a(f"s_mov_b32 s{sThr}, -1.0")
        a.label(lz)
        lall = a.newlabel("SP")
        a(f"s_add_i32 s{sT0}, s{sU}, 1")
        a(f"s_cmp_lt_i32 s{sT0}, s{sUd}")
        a(f"s_cbranch_scc1 {lgo}")
        a(f"v_mov_b32 v{vT}, {NEG_BIG:#x}")
        a(f"s_cmp_gt_i32 s{sT0}, s{sUd}")
        a(f"s_cbranch_scc1 {lall}")
        for r in range(16):
            a(f"v_cmp_gt_i32 vcc, {8 * (r >> 2) + (r & 3)}, v{vTq}")
            a("s_nop 1")
            a(f"v_cndmask_b32 v{vN + r}, v{vN + r}, v{vT}, vcc")
        a("s_nop 1")
        a(f"s_branch {lgo}")
        a.label(lall)
        for r in range(16):
            a(f"v_mov_b32 v{vN + r}, v{vT}")
        a("s_nop 1")
        a(f"s_branch {lgo}")
        a.label(li)
        if par == 1:
            sync_dma()
        a.label(ln)
    a(f"v_mov_b32 v{vCur}, v{vNxt}")
    a(f"s_add_u32 s{sN}, s{sN}, 1")
    a(f"s_add_u32 s{sT0}, s{sN}, 1")
    a(f"s_and_b32 s{sT0}, s{sT0}, 3")
    a(f"s_lshl_b32 s{sT0}, s{sT0}, 15")
    a(f"v_add_u32 v{vNxt}, s{sT0}, v{vL16}")
    a(f"s_cmp_le_u32 s{sN}, s{sNT}")
    a(f"s_cbranch_scc1 {lLoop}")
    a(f"s_branch {lExit}")
    for (R, lab, back) in slow_blocks:
        slow_path(R, lab, back)
    a.label(lExit)
    a("s_waitcnt lgkmcnt(0)")
```

```python
from gen import *
import gen
NEG_BIG = 0xff7fffff
B_LIMIT = 40.0
HELD = 192
A_RING = 98304


import os
DBG = os.environ.get("DBG", "")
def lstamp(a, lane):
    if 'ls' in DBG:
        a("s_memtime s[12:13]")
        a("s_waitcnt lgkmcnt(0)")
        a(f"v_writelane_b32 v0, s12, {lane}")

class VmQ:
    def __init__(self): self.q = []
    def issue(self, tag, n): self.q.append((tag, n))
    def wait(self, tag):
        idx = [i for i, (t, n) in enumerate(self.q) if t == tag]
        if not idx: return None
        idx = idx[-1]
        rest = sum(n for (t, n) in self.q[idx + 1:])
        del self.q[:idx + 1]
        return rest


TRICKLE = [2] * 8 + [0] * 8
assert sum(TRICKLE) == 16


def kv_store(a, i, sWS, vaddr):
    tile = i >> 1
    r, c = tile >> 1, tile & 1
    a(f"s_add_u32 s12, s3, {r * 8192}")
    a(f"buffer_store_dwordx4 {vr(HELD + 8 * tile + 4 * (i & 1), 4)}, v{vaddr}, {sr(sWS, 4)}, s12 offen offset:{(2 * c + (i & 1)) * 1024} sc1")


class AttnA:
    vL16, vAd, vT, vAcc, vE = 2, 6, 7, 10, 12
    vB = 3
    vSl = 144
    vE8 = 180
    vKn = 11
    vStg = 148
    vQ, vO, vS0, vS1, vP0, vP1, vN, FR = 16, 32, 48, 64, 80, 88, 96, 112
    sHead, sQb, sT0, sT1, sKoff, sMask, sEx, sN, sRing, sW11, sKmax = S_T, S_T + 1, S_T + 2, S_T + 3, S_T + 4, S_T + 5, S_T + 6, S_T + 8, S_T + 9, S_T + 10, S_T + 11

    def __init__(self, a, half):
        self.a, self.half = a, half
        self.sWS = SRD3
        self.vm = VmQ()

    @staticmethod
    def slot_base(n):
        return A_RING + ((n + 2) & 3) * 16384

    def dma(self, n):
        a = self.a
        b = self.slot_base(n)
        a(f"s_lshl_b32 s{self.sT1}, s{S_WAVE}, 11")
        a(f"s_add_u32 m0, s{self.sT1}, {b}")
        a(f"s_add_u32 s{self.sT0}, s{self.sT1}, {WS_KAF + n * 8192}")
        a(f"buffer_load_dwordx4 v{self.vL16}, {sr(self.sWS, 4)}, s{self.sT0} offen lds")
        a(f"buffer_load_dwordx4 v{self.vL16}, {sr(self.sWS, 4)}, s{self.sT0} offen offset:1024 lds")
        a(f"s_add_u32 m0, s{self.sT1}, {b + 8192}")
        a(f"s_add_u32 s{self.sT0}, s{self.sT1}, {WS_VAF + n * 8192}")
        a(f"buffer_load_dwordx4 v{self.vL16}, {sr(self.sWS, 4)}, s{self.sT0} offen lds")
        a(f"buffer_load_dwordx4 v{self.vL16}, {sr(self.sWS, 4)}, s{self.sT0} offen offset:1024 lds")
        self.vm.issue(("st", n), 4)

    def prologue(self, nst=3):
        a = self.a
        a(f"s_and_b32 s{self.sHead}, s2, 3")
        a(f"s_lshl_b32 s{self.sHead}, s{self.sHead}, 2")
        a(f"s_add_u32 s{self.sHead}, s{self.sHead}, s{S_WAVE}")
        if self.half:
            a(f"s_add_u32 s{self.sHead}, s{self.sHead}, 16")
        a(f"s_lshr_b32 s{self.sQb}, s2, 2")
        a(f"v_lshlrev_b32 v{self.vL16}, 4, v1")
        vAd, vT, vQ = self.vAd, self.vT, self.vQ
        a(f"v_and_b32 v{vAd}, 31, v1")
        a(f"s_lshl_b32 s{self.sT0}, s{self.sQb}, 5")
        a(f"v_add_u32 v{vAd}, s{self.sT0}, v{vAd}")
        a(f"v_mul_u32_u24 v{vAd}, 1152, v{vAd}")
        a(f"v_lshrrev_b32 v{vT}, 5, v1")
        a(f"v_lshl_add_u32 v{vT + 1}, v{vT}, 3, v{vAd}")
        a(f"s_mul_i32 s{self.sT0}, s{self.sHead}, 36")
        a(f"s_add_u32 s{self.sT0}, s{self.sT0}, {WS_QA}")
        a(f"buffer_load_dwordx2 {vr(vQ, 2)}, v{vT + 1}, {sr(self.sWS, 4)}, s{self.sT0} offen")
        a(f"buffer_load_dwordx2 {vr(vQ + 2, 2)}, v{vT + 1}, {sr(self.sWS, 4)}, s{self.sT0} offen offset:16")
        a(f"buffer_load_dword v{vQ + 4}, v{vAd}, {sr(self.sWS, 4)}, s{self.sT0} offen offset:32")
        a(f"v_lshlrev_b32 v{vT}, 2, v1")
        a(f"s_mov_b32 s{self.sT0}, {WS_FLAG + FLG_KN}")
        a(f"buffer_load_dword v{self.vKn}, v{vT}, {sr(self.sWS, 4)}, s{self.sT0} offen")
        self.vm.issue("q", 4)
        for n in range(nst):
            self.dma(n)
        self.issued = nst

    def rowmax(self, S):
        a, vT = self.a, self.vT
        a(f"v_max3_f32 v{vT}, v{S}, v{S + 1}, v{S + 2}")
        for i in range(3, 15, 2):
            a(f"v_max3_f32 v{vT}, v{vT}, v{S + i}, v{S + i + 1}")
        a(f"v_max_f32 v{vT}, v{vT}, v{S + 15}")
        a(f"v_mov_b32 v{vT + 1}, v{vT}")
        a("s_nop 1")
        a(f"v_permlane32_swap_b32 v{vT}, v{vT + 1}")
        a("s_nop 1")
        a(f"v_max_f32 v{vT}, v{vT}, v{vT + 1}")
        a(f"v_add_f32 v{vT}, {f32bits(T_OFF):#x}, v{vT}")

    def dma_dyn(self):
        a = self.a
        a(f"s_add_u32 m0, s{self.sRing}, s{self.sW11}")
        a(f"s_add_u32 s{self.sT0}, s{self.sKoff}, {WS_VAF - WS_KAF}")
        a(f"buffer_load_dwordx4 v{self.vL16}, {sr(self.sWS, 4)}, s{self.sKoff} offen lds")
        a(f"buffer_load_dwordx4 v{self.vL16}, {sr(self.sWS, 4)}, s{self.sKoff} offen offset:1024 lds")
        a(f"s_add_u32 m0, m0, 8192")
        a(f"s_add_u32 s{self.sKoff}, s{self.sKoff}, 8192")
        a(f"s_min_u32 s{self.sKoff}, s{self.sKoff}, s{self.sKmax}")
        a(f"buffer_load_dwordx4 v{self.vL16}, {sr(self.sWS, 4)}, s{self.sT0} offen lds")
        a(f"buffer_load_dwordx4 v{self.vL16}, {sr(self.sWS, 4)}, s{self.sT0} offen offset:1024 lds")

    def frag_read(self, j, i):
        vPrv, vCur, vNxt = self.vSl, self.vSl + 1, self.vSl + 2
        kb = j + 1 if i < 2 else j - 1
        reg = vPrv if kb < 0 else (vCur if kb < 4 else vNxt)
        kk = kb & 3
        off = (kk * 2048 + i * 1024) if i < 2 else (8192 + kk * 2048 + (i - 2) * 1024)
        self.a(f"ds_read_b128 {vr(self.FR + 4 * ((4 * j + i) % 8), 4)}, v{reg} offset:{off}")

    def loop(self, check, stores, n_end, slow):
        a = self.a
        vQ, vO, vS0, vS1, vP0, vP1, vN, FR, vT, vE, vAcc = self.vQ, self.vO, self.vS0, self.vS1, self.vP0, self.vP1, self.vN, self.FR, self.vT, self.vE, self.vAcc
        vPrv, vCur, vNxt = self.vSl, self.vSl + 1, self.vSl + 2
        sN = self.sN
        D = 4
        lLoop = a.newlabel("AA_LOOP")
        a.label(lLoop)
        for j in range(4):
            par = j & 1
            R = dict(Sc=vS0, Sn=vS1, Pc=vP0, Pp=vP1) if par == 0 else dict(Sc=vS1, Sn=vS0, Pc=vP1, Pp=vP0)
            E = lambda g: self.vE8 + 4 * (g & 1)
            for i in range(4):
                if i % 2 == 0:
                    a(f"s_waitcnt lgkmcnt({D - 2})")
                fr = FR + 4 * ((4 * j + i) % 8)
                if i < 2:
                    mfma(a, R['Sn'], fr, vQ + 4 * i, vN if i == 0 else None)
                else:
                    mfma(a, vO, fr, R['Pp'] + 4 * (i - 2))
                if j == 0 and stores and i in (0, 2):
                    a(f"s_lshl_b32 s{self.sT1}, s{sN}, 3")
                    if i:
                        a(f"s_add_u32 s{self.sT1}, s{self.sT1}, 4")
                    a(f"s_set_gpr_idx_on s{self.sT1}, 1")
                    a("s_nop 0")
                    for q in range(4):
                        a(f"v_mov_b32 v{self.vStg + 2 * i + q}, v{HELD + q}")
                    a("s_set_gpr_idx_off")
                if j == 1 and i == 2:
                    a("s_waitcnt vmcnt(4)")
                    a("s_barrier")
                    if stores:
                        a(f"s_lshr_b32 s{self.sT1}, s{sN}, 1")
                        a(f"s_lshl_b32 s{self.sT1}, s{self.sT1}, 13")
                        a(f"s_and_b32 s{self.sT0}, s{sN}, 1")
                        a(f"s_lshl_b32 s{self.sT0}, s{self.sT0}, 11")
                        a(f"s_add_u32 s{self.sT1}, s{self.sT1}, s{self.sT0}")
                        a(f"s_add_u32 s{self.sT1}, s{self.sT1}, s3")
                        a(f"buffer_store_dwordx4 {vr(self.vStg, 4)}, v{self.vL16}, {sr(self.sWS, 4)}, s{self.sT1} offen sc1")
                        a(f"buffer_store_dwordx4 {vr(self.vStg + 4, 4)}, v{self.vL16}, {sr(self.sWS, 4)}, s{self.sT1} offen offset:1024 sc1")
                if j == 3 and i == 2:
                    a("s_barrier")
                if j == 1 and i == 3:
                    self.dma_dyn()
                self.frag_read(j + 1, i)
                for q in range(4):
                    a(f"v_exp_f32 v{E(i) + q}, v{R['Sc'] + 4 * i + q}")
                    if q == 0 and i >= 2 and check:
                        if i == 2:
                            a(f"v_or_b32 v{vAcc}, v{R['Pc']}, v{R['Pc'] + 1}")
                        else:
                            a(f"v_or3_b32 v{vAcc}, v{vAcc}, v{R['Pc'] + 2}, v{R['Pc'] + 3}")
                    if q == 1 and i >= 1:
                        a(f"v_cvt_pk_bf16_f32 v{R['Pc'] + 2 * (i - 1)}, v{E(i - 1)}, v{E(i - 1) + 1}")
                    if q == 2 and i >= 1:
                        a(f"v_cvt_pk_bf16_f32 v{R['Pc'] + 2 * (i - 1) + 1}, v{E(i - 1) + 2}, v{E(i - 1) + 3}")
                    if j == 3 and i == 1:
                        x = [[f"s_add_u32 s{sN}, s{sN}, 1", f"s_add_u32 s{self.sT0}, s{sN}, 3"],
                             [f"s_and_b32 s{self.sT0}, s{self.sT0}, 3", f"s_lshl_b32 s{self.sT0}, s{self.sT0}, 14"],
                             [f"s_add_u32 s{self.sT0}, s{self.sT0}, {A_RING}", f"s_add_u32 s{self.sRing}, s{sN}, 1"],
                             [f"s_and_b32 s{self.sRing}, s{self.sRing}, 3", f"s_lshl_b32 s{self.sRing}, s{self.sRing}, 14",
                              f"s_add_u32 s{self.sRing}, s{self.sRing}, {A_RING}"]][q]
                        for y in x:
                            a(y)
            a(f"v_cvt_pk_bf16_f32 v{R['Pc'] + 6}, v{E(3)}, v{E(3) + 1}")
            if check:
                a(f"v_or3_b32 v{vAcc}, v{vAcc}, v{R['Pc'] + 4}, v{R['Pc'] + 5}")
            elif j == 3:
                a(f"v_mov_b32 v{vPrv}, v{vCur}")
            else:
                a("s_nop 0")
            a(f"v_cvt_pk_bf16_f32 v{R['Pc'] + 7}, v{E(3) + 2}, v{E(3) + 3}")
            if check:
                if j == 3:
                    a(f"v_mov_b32 v{vPrv}, v{vCur}")
                a("s_nop 1")
                a(f"v_or3_b32 v{vAcc}, v{vAcc}, v{R['Pc'] + 6}, v{R['Pc'] + 7}")
                a(f"v_and_b32 v{vAcc}, s{self.sMask}, v{vAcc}")
                a(f"v_cmp_ne_u32 vcc, 0, v{vAcc}")
            if j == 3:
                a(f"v_mov_b32 v{vCur}, v{vNxt}")
                a(f"v_add_u32 v{vNxt}, s{self.sT0}, v{self.vL16}")
            if check:
                lslow, lback = a.newlabel("AA_SLOW"), a.newlabel("AA_BACK")
                a(f"s_cbranch_vccnz {lslow}")
                a.label(lback)
                slow.append((R, lslow, lback))
        a(f"s_cmp_lt_u32 s{sN}, {n_end}")
        a(f"s_cbranch_scc1 {lLoop}")

    def loops(self, check, trickle, slow):
        if trickle:
            self.loop(check, True, 8, slow)
        self.loop(check, False, 16, slow)

    def main(self, step_hook=None, trickle=False):
        a = self.a
        vQ, vO, vS0, vS1, vP0, vP1, vN, FR, vT, vE, vAcc = self.vQ, self.vO, self.vS0, self.vS1, self.vP0, self.vP1, self.vN, self.FR, self.vT, self.vE, self.vAcc
        vPrv, vCur, vNxt = self.vSl, self.vSl + 1, self.vSl + 2
        sN = self.sN
        a(f"s_mov_b32 s{self.sMask}, 0x40004000")
        for i in range(16):
            a(f"v_mov_b32 v{vO + i}, 0")
        for i in range(8):
            a(f"v_mov_b32 v{vP1 + i}, 0")
        for i in range(5, 8):
            a(f"v_mov_b32 v{vQ + i}, 0")
        a(f"v_add_u32 v{vPrv}, {self.slot_base(0)}, v{self.vL16}")
        a(f"v_add_u32 v{vCur}, {self.slot_base(0)}, v{self.vL16}")
        a(f"v_add_u32 v{vNxt}, {self.slot_base(1)}, v{self.vL16}")
        a(f"s_lshl_b32 s{self.sW11}, s{S_WAVE}, 11")
        a(f"s_add_u32 s{self.sKoff}, s{self.sW11}, {WS_KAF + 3 * 8192}")
        a(f"s_add_u32 s{self.sKmax}, s{self.sW11}, {WS_KAF + 15 * 8192}")
        a(f"s_mov_b32 s{self.sRing}, {self.slot_base(3)}")
        a(f"v_cmp_gt_u32 vcc, 32, v1")
        a(f"s_waitcnt vmcnt({self.vm.wait(('st', 0))})")
        a("s_nop 0")
        a(f"v_cndmask_b32 v{vQ + 4}, 0, v{vQ + 4}, vcc")
        a("s_barrier")
        while self.issued < 3:
            self.dma(self.issued); self.issued += 1
        for off in (0x041F, 0x081F, 0x101F, 0x201F, 0x401F):
            a(f"ds_swizzle_b32 v{vT}, v{self.vKn} offset:{off:#x}")
            a("s_waitcnt lgkmcnt(0)")
            a(f"v_max_u32 v{self.vKn}, v{self.vKn}, v{vT}")
        a(f"v_mov_b32 v{vT}, v{self.vKn}")
        a("s_nop 1")
        a(f"v_permlane32_swap_b32 v{self.vKn}, v{vT}")
        a("s_nop 1")
        a(f"v_max_u32 v{self.vKn}, v{self.vKn}, v{vT}")
        a(f"ds_read_b128 {vr(FR, 4)}, v{vCur}")
        a(f"ds_read_b128 {vr(FR + 4, 4)}, v{vCur} offset:1024")
        a(f"v_mov_b32 v{vT}, 0")
        for i in range(5):
            a(f"v_lshlrev_b32 v{vE}, 16, v{vQ + i}")
            a(f"v_and_b32 v{vE + 1}, 0xffff0000, v{vQ + i}")
            a(f"v_fmac_f32 v{vT}, v{vE}, v{vE}")
            a(f"v_fmac_f32 v{vT}, v{vE + 1}, v{vE + 1}")
        a(f"v_mov_b32 v{vT + 1}, v{vT}")
        a("s_nop 1")
        a(f"v_permlane32_swap_b32 v{vT}, v{vT + 1}")
        a("s_nop 1")
        a(f"v_add_f32 v{vT}, v{vT}, v{vT + 1}")
        a(f"v_mul_f32 v{vT}, v{vT}, v{self.vKn}")
        a(f"v_sqrt_f32 v{vT}, v{vT}")
        a("s_nop 0")
        a(f"v_mul_f32 v{vT}, {f32bits(1.02):#x}, v{vT}")
        a(f"v_add_f32 v{vT}, {f32bits(0.01):#x}, v{vT}")
        a(f"v_cmp_nge_f32 vcc, {f32bits(B_LIMIT):#x}, v{vT}")
        a(f"s_mov_b32 s{sN}, 0")
        lchk, lj = a.newlabel("AA_CHK"), a.newlabel("AA_J")
        a(f"s_cbranch_vccnz {lchk}")
        for i in range(16):
            a(f"v_sub_f32 v{vN + i}, 0, v{vT}")
        a("s_waitcnt lgkmcnt(0)")
        a("s_nop 0")
        mfma(a, vS0, FR, vQ, vN)
        mfma(a, vS0, FR + 4, vQ + 4)
        for i in range(4):
            self.frag_read(0, i)
        a("s_nop 15")
        slow = []
        self.loops(False, trickle, slow)
        a(f"s_branch {lj}")
        a.label(lchk)
        a("s_waitcnt lgkmcnt(0)")
        mfma(a, vS0, FR, vQ, "0")
        mfma(a, vS0, FR + 4, vQ + 4)
        a("s_nop 15")
        self.rowmax(vS0)
        for i in range(16):
            a(f"v_sub_f32 v{vN + i}, 0, v{vT}")
            a(f"v_sub_f32 v{vS0 + i}, v{vS0 + i}, v{vT}")
        for i in range(4):
            self.frag_read(0, i)
        self.loops(True, trickle, slow)
        a.label(lj)
        a("s_waitcnt lgkmcnt(0)")
        mfma(a, vO, FR + 8, vP1)
        mfma(a, vO, FR + 12, vP1 + 4)
        a("s_nop 15")
        a(f"v_rcp_f32 v{vT}, v{vO + 10}")
        a("s_nop 0")
        for i in range(10):
            a(f"v_mul_f32 v{vO + i}, v{vO + i}, v{vT}")
        for i in range(5):
            a(f"v_cvt_pk_bf16_f32 v{vP0 + i}, v{vO + 2 * i}, v{vO + 2 * i + 1}")
        a(f"v_lshrrev_b32 v{self.vAd}, 1, v{self.vAd}")
        a(f"v_lshrrev_b32 v{vT}, 5, v1")
        a(f"v_lshl_add_u32 v{vT + 1}, v{vT}, 3, v{self.vAd}")
        a(f"s_and_b32 s{self.sT0}, s{self.sHead}, 15")
        a(f"s_mul_i32 s{self.sT0}, s{self.sT0}, 36")
        a(f"s_add_u32 s{self.sT0}, s{self.sT0}, {WS_CTXA + self.half * 2048 * 576}")
        fl = gen.CTX_FLAGS
        a(f"buffer_store_dwordx2 {vr(vP0, 2)}, v{vT + 1}, {sr(self.sWS, 4)}, s{self.sT0} offen{fl}")
        a(f"buffer_store_dwordx2 {vr(vP0 + 2, 2)}, v{vT + 1}, {sr(self.sWS, 4)}, s{self.sT0} offen offset:16{fl}")
        a(f"v_cmp_gt_u32 vcc, 32, v1")
        a(f"s_and_saveexec_b64 {sr(self.sEx, 2)}, vcc")
        a(f"buffer_store_dword v{vP0 + 4}, v{self.vAd}, {sr(self.sWS, 4)}, s{self.sT0} offen offset:32{fl}")
        a(f"s_mov_b64 exec, {sr(self.sEx, 2)}")
        lEnd = a.newlabel("AA_END")
        a(f"s_branch {lEnd}")
        for (R, lab, back) in slow:
            a.label(lab)
            a("s_nop 15")
            self.rowmax(R['Sc'])
            a(f"v_max_f32 v{vT}, 0, v{vT}")
            for i in range(16):
                a(f"v_sub_f32 v{vN + i}, v{vN + i}, v{vT}")
                a(f"v_sub_f32 v{R['Sc'] + i}, v{R['Sc'] + i}, v{vT}")
                a(f"v_sub_f32 v{R['Sn'] + i}, v{R['Sn'] + i}, v{vT}")
            a(f"v_exp_f32 v{vT + 1}, -v{vT}")
            a("s_nop 0")
            for i in range(16):
                a(f"v_mul_f32 v{vO + i}, v{vO + i}, v{vT + 1}")
            for p in range(8):
                e = vE + 2 * (p & 1)
                a(f"v_exp_f32 v{e}, v{R['Sc'] + 2 * p}")
                a(f"v_exp_f32 v{e + 1}, v{R['Sc'] + 2 * p + 1}")
                a("s_nop 0")
                a(f"v_cvt_pk_bf16_f32 v{R['Pc'] + p}, v{e}, v{e + 1}")
            a("s_nop 1")
            a(f"s_branch {back}")
        a.label(lEnd)


class QProj:
    QST = 24576
    vA, vW, vRA, vRW, vX, vL16 = 2, 6, 8, 12, 64, 7
    F0, F1, ACC = 16, 40, 64
    HAND = 65536
    NH = 18
    sHead, sI, sT0, sT1, sAoff, sWoff, sM0a, sM0w, sG, sQ0, sQ1 = [S_T + i for i in range(11)]

    def __init__(self, a):
        self.a = a
        self.sX, self.sWQ, self.sWS = SRD0, SRD1, SRD3
        self.vm = VmQ()

    def setup(self):
        a = self.a
        s = self
        make_srd(a, s.sX, P_BX, 2048 * 576 * 2)
        make_srd(a, s.sWQ, P_BWQ, 576 * 4096 * 2)
        a(f"s_and_b32 s{s.sHead}, s2, 31")
        a(f"s_lshr_b32 s{s.sI}, s2, 5")
        a(f"s_sub_u32 s{s.sG}, s{S_WAVE}, 4")
        a(f"s_lshl_b32 s{s.sT0}, s{s.sI}, 2")
        a(f"s_add_u32 s{s.sQ0}, s{s.sT0}, s{s.sG}")
        a(f"s_sub_u32 s{s.sQ1}, 63, s{s.sQ0}")
        vX = s.vX
        a(f"v_lshlrev_b32 v{s.vL16}, 4, v1")
        a(f"v_lshrrev_b32 v{vX + 1}, 4, v1")
        a(f"v_and_b32 v{vX + 2}, 3, v1")
        a(f"v_xor_b32 v{vX + 3}, v{vX + 2}, v{vX + 1}")
        for b, sq in enumerate((s.sQ0, s.sQ1)):
            a(f"v_lshrrev_b32 v{vX}, 2, v1")
            a(f"s_lshl_b32 s{s.sT0}, s{sq}, 5")
            a(f"v_add_u32 v{vX}, s{s.sT0}, v{vX}")
            a(f"v_mul_u32_u24 v{vX}, 1152, v{vX}")
            a(f"v_lshl_add_u32 v{s.vA + b}, v{vX + 3}, 4, v{vX}")
        a(f"v_and_b32 v{vX + 2}, 15, v1")
        a(f"v_lshlrev_b32 v{vX + 3}, 2, v{vX + 1}")
        a(f"v_xor_b32 v{vX + 2}, v{vX + 2}, v{vX + 3}")
        a(f"v_lshlrev_b32 v{vX + 2}, 4, v{vX + 2}")
        a(f"v_lshl_add_u32 v{s.vW}, v{vX + 1}, 13, v{vX + 2}")
        a(f"s_lshl_b32 s{s.sT0}, s{s.sHead}, 8")
        a(f"v_add_u32 v{s.vW}, s{s.sT0}, v{s.vW}")
        a(f"v_and_b32 v{vX}, 31, v1")
        a(f"s_lshl_b32 s{s.sT0}, s{s.sG}, 6")
        a(f"v_add_u32 v{vX + 1}, s{s.sT0}, v{vX}")
        a(f"v_lshlrev_b32 v{vX + 1}, 6, v{vX + 1}")
        a(f"v_bfe_u32 v{vX + 2}, v1, 2, 2")
        a(f"v_lshrrev_b32 v{vX + 3}, 5, v1")
        for t in range(2):
            a(f"v_add_u32 v{vX + 4}, {2 * t}, v{vX + 3}")
            a(f"v_xor_b32 v{vX + 4}, v{vX + 4}, v{vX + 2}")
            a(f"v_lshl_add_u32 v{s.vRA + t}, v{vX + 4}, 4, v{vX + 1}")
            a(f"v_add_u32 v{s.vRA + 2 + t}, {2 * s.QST}, v{s.vRA + t}")
        a(f"v_bfe_u32 v{vX}, v1, 2, 2")
        a(f"v_lshrrev_b32 v{vX + 1}, 5, v1")
        a(f"v_lshl_add_u32 v{vX + 1}, v{vX + 1}, 3, v{vX}")
        a(f"v_lshlrev_b32 v{vX + 1}, 8, v{vX + 1}")
        a(f"v_bfe_u32 v{vX + 2}, v1, 4, 1")
        a(f"v_bfe_u32 v{vX + 3}, v1, 1, 1")
        a(f"v_lshl_add_u32 v{vX + 2}, v{vX + 2}, 1, v{vX + 3}")
        a(f"v_lshl_add_u32 v{vX + 1}, v{vX + 2}, 4, v{vX + 1}")
        a(f"v_and_b32 v{vX + 2}, 1, v1")
        a(f"v_lshl_add_u32 v{vX + 1}, v{vX + 2}, 3, v{vX + 1}")
        a(f"v_add_u32 v{vX + 1}, 16384, v{vX + 1}")
        for c in range(4):
            a(f"v_xor_b32 v{vX + 2}, {c}, v{vX}")
            a(f"v_lshl_add_u32 v{s.vRW + c}, v{vX + 2}, 6, v{vX + 1}")
        a(f"s_lshl_b32 s{s.sM0a}, s{s.sG}, 12")
        a(f"s_lshl_b32 s{s.sM0w}, s{s.sG}, 11")
        a(f"s_add_u32 s{s.sM0w}, s{s.sM0w}, 16384")
        a(f"s_lshl_b32 s{s.sWoff}, s{s.sG}, 16")
        self.whi = False

    def dma_ops(self, h):
        s = self
        b = (h & 3) * s.QST
        ops = []
        for blk in range(2):
            for j in range(2):
                ops.append([f"s_add_u32 m0, s{s.sM0a}, {b + (2 * blk + j) * 1024}",
                            f"s_mov_b32 s{s.sT0}, {h * 64 + j * 16 * 1152}",
                            f"buffer_load_dwordx4 v{s.vA + blk}, {sr(s.sX, 4)}, s{s.sT0} offen lds"])
        for j in range(2):
            ops.append([f"s_add_u32 m0, s{s.sM0w}, {b + j * 1024}",
                        f"s_add_u32 s{s.sT0}, s{s.sWoff}, {h * 262144 + j * 32768}",
                        f"buffer_load_dwordx4 v{s.vW}, {sr(s.sWQ, 4)}, s{s.sT0} offen lds"])
        return ops

    def dma(self, h):
        for g in self.dma_ops(h):
            for x in g:
                self.a(x)
        self.vm.issue(("q", h), 6)

    def reads(self, F, h, t):
        s, a = self, self.a
        hi = (h & 3) >= 2
        if hi != s.whi:
            d = 2 * s.QST if hi else -2 * s.QST
            for c in range(4):
                a(f"v_add_u32 v{s.vRW + c}, {d & 0xffffffff:#x}, v{s.vRW + c}")
            s.whi = hi
        b = (h & 1) * s.QST
        for q in range(2):
            a(f"ds_read_b128 {vr(F + 4 * q, 4)}, v{s.vRA + (2 if hi else 0) + t} offset:{b + q * 2048}")
        for c in range(4):
            for j in range(2):
                a(f"ds_read_b64_tr_b16 {vr(F + 8 + 4 * c + 2 * j, 2)}, v{s.vRW + c} offset:{b + (16 * t + 4 * j) * 256}")

    def mf(self, F, first, fill):
        k = 0
        for q in range(2):
            for c in range(4):
                mfma(self.a, self.ACC + 16 * (4 * q + c), F + 8 + 4 * c, F + 4 * q, "0" if first else None)
                if fill and (k & 1) == 0:
                    for x in fill.pop(0):
                        self.a(x)
                k += 1

    def main(self, tail_hook):
        s, a = self, self.a
        F0, F1 = s.F0, s.F1
        def store_ops(m):
            if m >= 16:
                return []
            t = Asm()
            kv_store(t, m, s.sWS, s.vL16)
            return [[x.strip() for x in t.lines]]
        a(f"s_waitcnt vmcnt({s.vm.wait(('q', 0))})")
        a("s_barrier")
        if 'prio' in DBG: a("s_setprio 2")
        s.reads(F0, 0, 0)
        fill = []
        for m in range(s.NH):
            s.reads(F1, m, 1)
            a("s_waitcnt lgkmcnt(10)")
            s.mf(F0, m == 0, fill)
            assert not fill
            lstamp(a, 3 * m)
            if m + 1 < s.NH:
                a(f"s_waitcnt vmcnt({s.vm.wait(('q', m + 1))}) lgkmcnt(0)")
            else:
                a("s_waitcnt lgkmcnt(0)")
            lstamp(a, 3 * m + 1)
            a("s_barrier")
            lstamp(a, 3 * m + 2)
            fill = store_ops(m)
            if fill:
                s.vm.issue(("kvst", m), 1)
            if m + 4 < s.NH:
                fill += s.dma_ops(m + 4)
                s.vm.issue(("q", m + 4), 6)
            if m + 1 < s.NH:
                s.reads(F0, m + 1, 0)
            s.mf(F1, False, fill)
        assert not fill
        if 'prio' in DBG: a("s_setprio 0")
        a(f"s_mov_b32 s{s.sT0}, {f32bits(C_B):#x}")
        a("s_nop 7")
        a("s_nop 7")
        for i in range(64):
            a(f"v_mul_f32 v{s.ACC + i}, s{s.sT0}, v{s.ACC + i}")
        for i in range(32):
            a(f"v_cvt_pk_bf16_f32 v{s.ACC + i}, v{s.ACC + 2 * i}, v{s.ACC + 2 * i + 1}")
        a(f"s_lshl_b32 s{s.sT1}, s{s.sG}, 13")
        a(f"s_add_u32 s{s.sT1}, s{s.sT1}, {s.HAND}")
        a(f"v_add_u32 v{s.vW}, s{s.sT1}, v{s.vL16}")
        for t in range(8):
            a(f"ds_write_b128 v{s.vW}, {vr(s.ACC + 4 * t, 4)} offset:{t * 1024}")
        a("s_waitcnt lgkmcnt(0)")
        a("s_barrier")
        for i in range(64, 128):
            a(f"v_mul_f32 v{s.ACC + i}, s{s.sT0}, v{s.ACC + i}")
        for i in range(32):
            a(f"v_cvt_pk_bf16_f32 v{16 + i}, v{s.ACC + 64 + 2 * i}, v{s.ACC + 64 + 2 * i + 1}")
        for m in range(s.NH + 1, 32):
            if m == 20:
                a("s_waitcnt vmcnt(0)")
            a("s_barrier")
            lstamp(a, 36 + m) if m < 28 else None
            tail_hook(m)


def warm_q(a, vtmp, part):
    sX, sWQ = 8 + 0, None
    j = "s13"
    if part == 0:
        make_srd(a, SRD4, P_BX, 2048 * 576 * 2)
        a("s_lshr_b32 s13, s2, 3")
        a("s_mul_i32 s13, s13, 576")
        a(f"v_add_u32 v{vtmp}, s13, v0")
        a(f"v_lshlrev_b32 v{vtmp}, 7, v{vtmp}")
        a(f"buffer_load_dword v{vtmp + 1}, v{vtmp}, {sr(SRD4, 4)}, 0 offen")
        a(f"v_cmp_gt_u32 vcc, 64, v0")
        a(f"v_add_u32 v{vtmp}, 0x10000, v{vtmp}")
        a("s_nop 0")
        a(f"v_cndmask_b32 v{vtmp}, -1, v{vtmp}, vcc")
        a(f"buffer_load_dword v{vtmp + 2}, v{vtmp}, {sr(SRD4, 4)}, 0 offen")
    else:
        make_srd(a, SRD4, P_BWQ, 576 * 4096 * 2)
        a("s_lshr_b32 s13, s2, 5")
        a("s_mul_i32 s13, s13, 72")
        a(f"v_lshrrev_b32 v{vtmp}, 1, v0")
        a(f"v_add_u32 v{vtmp}, s13, v{vtmp}")
        a(f"v_lshlrev_b32 v{vtmp}, 13, v{vtmp}")
        a(f"v_and_b32 v{vtmp + 1}, 1, v0")
        a(f"v_lshl_add_u32 v{vtmp}, v{vtmp + 1}, 7, v{vtmp}")
        a("s_and_b32 s13, s2, 31")
        a("s_lshl_b32 s13, s13, 8")
        a(f"v_add_u32 v{vtmp}, s13, v{vtmp}")
        a(f"v_cmp_gt_u32 vcc, 144, v0")
        a("s_nop 1")
        a(f"v_cndmask_b32 v{vtmp}, -1, v{vtmp}, vcc")
        a(f"buffer_load_dword v{vtmp + 3}, v{vtmp}, {sr(SRD4, 4)}, 0 offen")
```

```python
from gen import *
import gen

OST = 20480
L_CTL = 81920


class OutG:
    vA, vW, vL16, vRA, vRW, vX = 2, 3, 7, 8, 12, 160
    F0, F1, ACC = 16, 36, 64
    sX, sIdx, sT0, sT1, sRt, sCt, sSplit, sAoff, sWoff, sM0a, sM0w, sG, sB, sIt, sTile = [S_T + i for i in range(15)]

    def __init__(self, a):
        self.a = a
        self.sWo, self.sWS, self.sOut = SRD1, SRD3, SRD2

    def ids(self):
        a, s = self.a, self
        a(f"s_and_b32 s{s.sX}, s2, 7")
        a(f"s_lshr_b32 s{s.sIdx}, s2, 3")
        a(f"s_sub_u32 s{s.sG}, s{S_WAVE}, 4")
        a(f"v_lshlrev_b32 v{s.vL16}, 4, v1")
        make_srd(a, s.sOut, P_OUT, 2048 * 1152 * 2)

    def w_setup(self, permuted):
        a, s = self.a, self
        vX = s.vX
        a(f"s_mul_i32 s{s.sT0}, s{s.sG}, 192")
        a(f"s_movk_i32 s{s.sT1}, 2731")
        for j in range(3):
            a(f"v_add_u32 v{vX}, s{s.sT0}, v1")
            if j:
                a(f"v_add_u32 v{vX}, {64 * j}, v{vX}")
            a(f"v_mul_lo_u32 v{vX + 1}, v{vX}, s{s.sT1}")
            a(f"v_lshrrev_b32 v{vX + 1}, 16, v{vX + 1}")
            a(f"v_mul_u32_u24 v{vX + 2}, 24, v{vX + 1}")
            a(f"v_sub_u32 v{vX + 2}, v{vX}, v{vX + 2}")
            a(f"v_bfe_u32 v{vX + 3}, v{vX + 1}, 1, 1")
            a(f"v_lshlrev_b32 v{vX + 3}, 2, v{vX + 3}")
            a(f"v_xor_b32 v{vX + 2}, v{vX + 2}, v{vX + 3}")
            a(f"v_mul_u32_u24 v{vX + 1}, 1152, v{vX + 1}")
            a(f"v_lshl_add_u32 v{s.vW + j}, v{vX + 2}, 4, v{vX + 1}")
        a(f"s_mul_i32 s{s.sT0}, s{s.sCt}, 384")
        for j in range(3):
            a(f"v_add_u32 v{s.vW + j}, s{s.sT0}, v{s.vW + j}")
        a(f"s_mul_i32 s{s.sM0w}, s{s.sG}, 3072")
        a(f"s_add_u32 s{s.sM0w}, s{s.sM0w}, 8192")
        a(f"s_lshl_b32 s{s.sM0a}, s{s.sG}, 11")
        a(f"v_bfe_u32 v{vX}, v1, 2, 2")
        a(f"v_lshrrev_b32 v{vX + 1}, 5, v1")
        a(f"v_lshl_add_u32 v{vX + 1}, v{vX + 1}, {2 if permuted else 3}, v{vX}")
        a(f"v_mul_u32_u24 v{vX + 1}, 384, v{vX + 1}")
        a(f"v_add_u32 v{vX + 1}, 8192, v{vX + 1}")
        a(f"v_and_b32 v{vX + 2}, 1, v1")
        a(f"v_lshl_add_u32 v{vX + 1}, v{vX + 2}, 3, v{vX + 1}")
        a(f"v_bfe_u32 v{vX + 2}, v1, 4, 1")
        a(f"v_bfe_u32 v{vX + 3}, v1, 1, 1")
        a(f"v_lshl_add_u32 v{vX + 2}, v{vX + 2}, 1, v{vX + 3}")
        a(f"v_bfe_u32 v{vX + 3}, v1, 3, 1")
        a(f"v_lshlrev_b32 v{vX + 3}, 2, v{vX + 3}")
        a(f"s_lshr_b32 s{s.sT0}, s{s.sG}, 1")
        a(f"s_mul_i32 s{s.sT0}, s{s.sT0}, 12")
        for c in range(3):
            a(f"s_add_u32 s{s.sT1}, s{s.sT0}, {4 * c}")
            a(f"v_add_u32 v{vX + 4}, s{s.sT1}, v{vX + 2}")
            a(f"v_xor_b32 v{vX + 4}, v{vX + 4}, v{vX + 3}")
            a(f"v_lshl_add_u32 v{s.vRW + c}, v{vX + 4}, 4, v{vX + 1}")
        s.permuted = permuted
        s.whi = False

    def setup_B(self):
        a, s = self.a, self
        make_srd(a, s.sWo, P_BWO, 4096 * 576 * 2)
        a(f"s_lshr_b32 s{s.sSplit}, s{s.sX}, 1")
        a(f"s_mul_i32 s{s.sT0}, s{s.sIdx}, 21846")
        a(f"s_lshr_b32 s{s.sT0}, s{s.sT0}, 16")
        a(f"s_mul_i32 s{s.sT1}, s{s.sT0}, 3")
        a(f"s_sub_u32 s{s.sCt}, s{s.sIdx}, s{s.sT1}")
        a(f"s_and_b32 s{s.sRt}, s{s.sX}, 1")
        a(f"s_lshl_b32 s{s.sRt}, s{s.sRt}, 3")
        a(f"s_add_u32 s{s.sRt}, s{s.sRt}, s{s.sT0}")
        a(f"s_mul_i32 s{s.sTile}, s{s.sRt}, 3")
        a(f"s_add_u32 s{s.sTile}, s{s.sTile}, s{s.sCt}")
        s.w_setup(True)
        a(f"s_mul_i32 s{s.sWoff}, s{s.sSplit}, {1024 * 1152}")
        a(f"s_lshl_b32 s{s.sT0}, s{s.sRt}, 2")
        a(f"s_add_u32 s{s.sT0}, s{s.sT0}, s{s.sG}")
        a(f"s_lshl_b32 s{s.sT0}, s{s.sT0}, 8")
        a(f"s_lshl_b32 s{s.sT1}, s{s.sSplit}, 6")
        a(f"s_add_u32 s{s.sT0}, s{s.sT0}, s{s.sT1}")
        a(f"s_lshl_b32 s{s.sT0}, s{s.sT0}, 10")
        a(f"s_add_u32 s{s.sAoff}, s{s.sT0}, {WS_CTXB}")
        a(f"s_and_b32 s{s.sT0}, s{s.sG}, 1")
        a(f"s_lshl_b32 s{s.sT0}, s{s.sT0}, 12")
        a(f"v_add_u32 v{s.vRA}, s{s.sT0}, v{s.vL16}")
        a(f"v_add_u32 v{s.vRA + 1}, 1024, v{s.vRA}")
        a(f"v_add_u32 v{s.vRA + 2}, {2 * OST}, v{s.vRA}")
        a(f"v_add_u32 v{s.vRA + 3}, {2 * OST}, v{s.vRA + 1}")
        s.isB = True

    def setup_A(self):
        a, s = self.a, self
        vX = s.vX
        make_srd(a, s.sWo, P_AWO, 576 * 576 * 2)
        a(f"s_mul_i32 s{s.sT0}, s{s.sX}, 6")
        a(f"s_add_u32 s{s.sT0}, s{s.sT0}, s{s.sIdx}")
        a(f"s_sub_u32 s{s.sT0}, s{s.sT0}, 24")
        a(f"s_mul_i32 s{s.sRt}, s{s.sT0}, 21846")
        a(f"s_lshr_b32 s{s.sRt}, s{s.sRt}, 16")
        a(f"s_mul_i32 s{s.sT1}, s{s.sRt}, 3")
        a(f"s_sub_u32 s{s.sCt}, s{s.sT0}, s{s.sT1}")
        s.w_setup(False)
        a(f"s_mov_b32 s{s.sWoff}, 0")
        a(f"s_mov_b32 s{s.sAoff}, {WS_CTXA}")
        a(f"v_lshrrev_b32 v{vX + 1}, 4, v1")
        a(f"v_and_b32 v{vX + 2}, 3, v1")
        a(f"v_xor_b32 v{vX + 3}, v{vX + 2}, v{vX + 1}")
        a(f"v_lshrrev_b32 v{vX}, 2, v1")
        a(f"s_lshl_b32 s{s.sT0}, s{s.sRt}, 7")
        a(f"s_lshl_b32 s{s.sT1}, s{s.sG}, 5")
        a(f"s_add_u32 s{s.sT0}, s{s.sT0}, s{s.sT1}")
        a(f"v_add_u32 v{vX}, s{s.sT0}, v{vX}")
        a(f"v_mul_u32_u24 v{vX}, 576, v{vX}")
        a(f"v_lshl_add_u32 v{s.vA}, v{vX + 3}, 4, v{vX}")
        a(f"v_and_b32 v{vX}, 31, v1")
        a(f"s_and_b32 s{s.sT0}, s{s.sG}, 1")
        a(f"s_lshl_b32 s{s.sT0}, s{s.sT0}, 6")
        a(f"v_add_u32 v{vX + 1}, s{s.sT0}, v{vX}")
        a(f"v_lshlrev_b32 v{vX + 1}, 6, v{vX + 1}")
        a(f"v_bfe_u32 v{vX + 2}, v1, 2, 2")
        a(f"v_lshrrev_b32 v{vX + 3}, 5, v1")
        for t in range(2):
            a(f"v_add_u32 v{vX + 4}, {2 * t}, v{vX + 3}")
            a(f"v_xor_b32 v{vX + 4}, v{vX + 4}, v{vX + 2}")
            a(f"v_lshl_add_u32 v{s.vRA + t}, v{vX + 4}, 4, v{vX + 1}")
            a(f"v_add_u32 v{s.vRA + 2 + t}, {2 * OST}, v{s.vRA + t}")
        s.isB = False

    def dma_ops(self, h):
        s = self
        b = (h & 3) * OST
        ops = []
        if s.isB:
            ops.append([f"s_add_u32 m0, s{s.sM0a}, {b}", "s_nop 0",
                        f"buffer_load_dwordx4 v{s.vL16}, {sr(s.sWS, 4)}, s{s.sAoff} offen lds"])
            ops.append([f"buffer_load_dwordx4 v{s.vL16}, {sr(s.sWS, 4)}, s{s.sAoff} offen offset:1024 lds",
                        f"s_add_u32 s{s.sAoff}, s{s.sAoff}, 2048"])
        else:
            ops.append([f"s_add_u32 m0, s{s.sM0a}, {b}", f"s_add_u32 s{s.sT0}, s{s.sAoff}, {16 * 576}",
                        f"buffer_load_dwordx4 v{s.vA}, {sr(s.sWS, 4)}, s{s.sAoff} offen lds"])
            ops.append([f"s_add_u32 m0, s{s.sM0a}, {b + 1024}", f"s_add_u32 s{s.sAoff}, s{s.sAoff}, 64",
                        f"buffer_load_dwordx4 v{s.vA}, {sr(s.sWS, 4)}, s{s.sT0} offen lds"])
        for j in range(3):
            g = [f"s_add_u32 m0, s{s.sM0w}, {b + j * 1024}", "s_nop 0",
                 f"buffer_load_dwordx4 v{s.vW + j}, {sr(s.sWo, 4)}, s{s.sWoff} offen lds"]
            if j == 2:
                g.append(f"s_add_u32 s{s.sWoff}, s{s.sWoff}, {32 * 1152}")
            ops.append(g)
        return ops

    def dma(self, h):
        for g in self.dma_ops(h):
            for x in g:
                self.a(x)

    def reads(self, F, h, t):
        s, a = self, self.a
        hi = (h & 3) >= 2
        if hi != s.whi:
            d = 2 * OST if hi else -2 * OST
            for c in range(3):
                a(f"v_add_u32 v{s.vRW + c}, {d & 0xffffffff:#x}, v{s.vRW + c}")
            s.whi = hi
        b = (h & 1) * OST
        for q in range(2):
            a(f"ds_read_b128 {vr(F + 4 * q, 4)}, v{s.vRA + (2 if hi else 0) + t} offset:{b + q * 2048}")
        for c in range(3):
            for j in range(2):
                a(f"ds_read_b64_tr_b16 {vr(F + 8 + 4 * c + 2 * j, 2)}, v{s.vRW + c} offset:{b + (16 * t + (8 if s.permuted else 4) * j) * 384}")

    def mf(self, F, fill):
        k = 0
        for q in range(2):
            for c in range(3):
                mfma(self.a, self.ACC + 16 * (3 * q + c), F + 8 + 4 * c, F + 4 * q)
                if fill and (k & 1) == 0:
                    for x in fill.pop(0):
                        self.a(x)
                k += 1

    def barrier(self):
        self.a("s_barrier")
        self.a(f"s_add_u32 s{self.sB}, s{self.sB}, 1")

    def half_stage(self, h, vm, dma_next, last, fill):
        s, a = self, self.a
        s.reads(s.F1, h, 1)
        a("s_waitcnt lgkmcnt(8)")
        s.mf(s.F0, fill)
        assert not fill
        a(f"s_waitcnt vmcnt({vm}) lgkmcnt(0)" if vm is not None else "s_waitcnt lgkmcnt(0)")
        s.barrier()
        fill = s.dma_ops(h + 4) if dma_next else []
        if not last:
            s.reads(s.F0, h + 1, 0)
        s.mf(s.F1, fill)
        return fill

    def zero_acc(self):
        for i in range(96):
            self.a(f"v_mov_b32 v{self.ACC + i}, 0")

    def run_straight(self, n):
        s, a = self, self.a
        for h in range(min(4, n)):
            s.dma(h)
        a(f"s_waitcnt vmcnt({5 * (min(4, n) - 1)})")
        s.barrier()
        s.reads(s.F0, 0, 0)
        fill = []
        for h in range(n):
            rem = min(n - 1, h + 3) - (h + 1)
            vm = 5 * max(rem, 0) if h + 1 < n else None
            fill = s.half_stage(h, vm, h + 4 < n, h + 1 == n, fill)
        assert not fill
        if s.whi:
            for c in range(3):
                a(f"v_add_u32 v{s.vRW + c}, {(-2 * OST) & 0xffffffff:#x}, v{s.vRW + c}")
            s.whi = False

    def run_B(self):
        s, a = self, self.a
        for h in range(4):
            s.dma(h)
        a("s_waitcnt vmcnt(15)")
        s.barrier()
        s.reads(s.F0, 0, 0)
        a(f"s_mov_b32 s{s.sIt}, 0")
        l = a.newlabel("OB_LOOP")
        a.label(l)
        for h in range(4):
            self.half_loop(h, 10, True, False)
        a(f"s_add_u32 s{s.sIt}, s{s.sIt}, 1")
        a(f"s_cmp_lt_u32 s{s.sIt}, 7")
        a(f"s_cbranch_scc1 {l}")
        for h, vm in zip(range(4), (10, 5, 0, None)):
            self.half_loop(h, vm, False, h == 3)

    def half_loop(self, h, vm, dma_next, last):
        s, a = self, self.a
        s.reads(s.F1, h, 1)
        a("s_waitcnt lgkmcnt(8)")
        s.mf(s.F0, [])
        a(f"s_waitcnt vmcnt({vm}) lgkmcnt(0)" if vm is not None else "s_waitcnt lgkmcnt(0)")
        s.barrier()
        fill = s.dma_ops(h + 4) if dma_next else []
        if not last:
            s.reads(s.F0, h + 1, 0)
        k = 0
        for q in range(2):
            for c in range(3):
                mfma(a, s.ACC + 16 * (3 * q + c), s.F1 + 8 + 4 * c, s.F1 + 4 * q)
                if fill:
                    for x in fill.pop(0):
                        a(x)
        assert not fill

    def out_addr(self, colbase_extra):
        a, s = self.a, self
        vX = s.vX
        a(f"v_and_b32 v{vX}, 31, v1")
        a(f"s_lshl_b32 s{s.sT0}, s{s.sRt}, 7")
        a(f"s_and_b32 s{s.sT1}, s{s.sG}, 1")
        a(f"s_lshl_b32 s{s.sT1}, s{s.sT1}, 6")
        a(f"s_add_u32 s{s.sT0}, s{s.sT0}, s{s.sT1}")
        a(f"v_add_u32 v{vX}, s{s.sT0}, v{vX}")
        a(f"v_mul_u32_u24 v{vX}, 2304, v{vX}")
        a(f"v_lshrrev_b32 v{vX + 1}, 5, v1")
        a(f"v_lshl_add_u32 v{vX}, v{vX + 1}, 3, v{vX}")
        a(f"s_mul_i32 s{s.sT0}, s{s.sCt}, 192")
        a(f"s_lshr_b32 s{s.sT1}, s{s.sG}, 1")
        a(f"s_mul_i32 s{s.sT1}, s{s.sT1}, 96")
        a(f"s_add_u32 s{s.sT0}, s{s.sT0}, s{s.sT1}")
        a(f"s_lshl_b32 s{s.sT0}, s{s.sT0}, 1")
        if colbase_extra:
            a(f"s_add_u32 s{s.sT0}, s{s.sT0}, {colbase_extra}")

    def store_q(self, q, soff):
        a, s = self.a, self
        for c in range(3):
            d = s.ACC + 16 * (3 * q + c)
            for i in range(8):
                a(f"v_cvt_pk_bf16_f32 v{d + i}, v{d + 2 * i}, v{d + 2 * i + 1}")
            for g in range(4):
                a(f"buffer_store_dwordx2 {vr(d + 2 * g, 2)}, v{s.vX}, {sr(s.sOut, 4)}, s{soff} offen offset:{c * 64 + g * 16}")

    def publish(self):
        a, s = self.a, self
        a(f"s_lshl_b32 s{s.sT0}, s{s.sTile}, 2")
        a(f"s_add_u32 s{s.sT0}, s{s.sT0}, s{s.sSplit}")
        a(f"s_lshl_b32 s{s.sT0}, s{s.sT0}, 2")
        a(f"s_and_b32 s{s.sIt}, s{s.sG}, 1")
        a(f"s_lshl_b32 s{s.sIt}, s{s.sIt}, 1")
        a(f"s_add_u32 s{s.sT0}, s{s.sT0}, s{s.sIt}")
        a(f"s_mul_i32 s{s.sT0}, s{s.sT0}, 6")
        a(f"s_lshr_b32 s{s.sT1}, s{s.sG}, 1")
        a(f"s_mul_i32 s{s.sT1}, s{s.sT1}, 3")
        a(f"s_add_u32 s{s.sT0}, s{s.sT0}, s{s.sT1}")
        a(f"s_lshl_b32 s{s.sT0}, s{s.sT0}, 12")
        a(f"s_add_u32 s{s.sT0}, s{s.sT0}, {WS_PART}")
        a("s_nop 7")
        for q in range(2):
            l = a.newlabel("PB")
            a(f"s_add_u32 s{s.sT1}, s{s.sIt}, {q}")
            a(f"s_cmp_eq_u32 s{s.sT1}, s{s.sSplit}")
            a(f"s_cbranch_scc1 {l}")
            for c in range(3):
                a(f"s_add_u32 s{s.sT1}, s{s.sT0}, {q * 6 * 4096 + c * 4096}")
                for g in range(4):
                    a(f"buffer_store_dwordx4 {vr(s.ACC + 16 * (3 * q + c) + 4 * g, 4)}, v{s.vL16}, {sr(s.sWS, 4)}, s{s.sT1} offen offset:{g * 1024} sc1")
            a.label(l)

    def gather(self):
        a, s = self.a, self
        lend = a.newlabel("GA")
        a(f"s_and_b32 s{s.sT0}, s{s.sG}, 1")
        a(f"s_lshr_b32 s{s.sT1}, s{s.sSplit}, 1")
        a(f"s_cmp_lg_u32 s{s.sT0}, s{s.sT1}")
        a(f"s_cbranch_scc1 {lend}")
        l0 = a.newlabel("GA")
        a(f"s_and_b32 s{s.sT0}, s{s.sSplit}, 1")
        a(f"s_cmp_eq_u32 s{s.sT0}, 0")
        a(f"s_cbranch_scc1 {l0}")
        for i in range(48):
            a(f"v_mov_b32 v{s.ACC + i}, v{s.ACC + 48 + i}")
        a.label(l0)
        T = 112
        for p in range(1, 4):
            a(f"s_add_u32 s{s.sT1}, s{s.sSplit}, {p}")
            a(f"s_and_b32 s{s.sT1}, s{s.sT1}, 3")
            a(f"s_lshl_b32 s{s.sT0}, s{s.sTile}, 2")
            a(f"s_add_u32 s{s.sT0}, s{s.sT0}, s{s.sT1}")
            a(f"s_lshl_b32 s{s.sT0}, s{s.sT0}, 2")
            a(f"s_add_u32 s{s.sT0}, s{s.sT0}, s{s.sSplit}")
            a(f"s_mul_i32 s{s.sT0}, s{s.sT0}, 6")
            a(f"s_lshr_b32 s{s.sT1}, s{s.sG}, 1")
            a(f"s_mul_i32 s{s.sT1}, s{s.sT1}, 3")
            a(f"s_add_u32 s{s.sT0}, s{s.sT0}, s{s.sT1}")
            a(f"s_lshl_b32 s{s.sT0}, s{s.sT0}, 12")
            a(f"s_add_u32 s{s.sT0}, s{s.sT0}, {WS_PART}")
            for c in range(3):
                if c:
                    a(f"s_add_u32 s{s.sT0}, s{s.sT0}, 4096")
                for g in range(4):
                    a(f"buffer_load_dwordx4 {vr(T + 48 * (p - 1) + 16 * c + 4 * g, 4)}, v{s.vL16}, {sr(s.sWS, 4)}, s{s.sT0} offen offset:{g * 1024}")
        for p in range(3):
            a(f"s_waitcnt vmcnt({12 * (2 - p)})")
            for i in range(48):
                a(f"v_add_f32 v{s.ACC + i}, v{s.ACC + i}, v{T + 48 * p + i}")
        s.vX = 16
        s.out_addr(1152)
        a(f"s_and_b32 s{s.sT1}, s{s.sSplit}, 1")
        a(f"s_mul_i32 s{s.sT1}, s{s.sT1}, {32 * 2304}")
        a(f"s_add_u32 s{s.sT0}, s{s.sT0}, s{s.sT1}")
        s.store_q(0, s.sT0)
        s.vX = 160
        a.label(lend)
```

```python
from gen import *
import gen
NEG_BIG = 0xff7fffff

def phase_aproj(a, s_task, after_first_barrier=None):
    sX, sWQ, sWK, sWS, sWV = SRD0, SRD1, SRD2, SRD3, SRD4
    make_srd(a, sX, P_AX, 2048 * 576 * 2)
    make_srd(a, sWQ, P_AWQ, 576 * 576 * 2)
    make_srd(a, sWK, P_AWK, 576 * 18 * 2)
    make_srd(a, sWV, P_AWV, 576 * 18 * 2)
    make_srd(a, sWS, P_WS, WS_BYTES)
    sW = S_WAVE
    sRt, sCp, sT0, sT1, sAoff, sM0a, sEx = S_T, S_T + 1, S_T + 2, S_T + 3, S_T + 4, S_T + 5, S_T + 6
    a(f"s_mul_i32 s{sRt}, s{s_task}, 6554")
    a(f"s_lshr_b32 s{sRt}, s{sRt}, 16")
    a(f"s_mul_i32 s{sT0}, s{sRt}, 10")
    a(f"s_sub_u32 s{sCp}, s{s_task}, s{sT0}")
    ACT0 = 73728
    vA0, vA1, vW, vRA, vRW, vRW2, vX = 2, 3, 4, 5, 9, 10, 11
    F0, F1, ACC = 20, 28, 48
    a(f"v_lshrrev_b32 v{vX}, 3, v1")
    a(f"s_lshl_b32 s{sT0}, s{sRt}, 7")
    a(f"s_lshl_b32 s{sT1}, s{sW}, 4")
    a(f"s_add_u32 s{sT0}, s{sT0}, s{sT1}")
    a(f"v_add_u32 v{vX}, s{sT0}, v{vX}")
    a(f"s_movk_i32 s{sT0}, 1152")
    a(f"v_mul_lo_u32 v{vX}, v{vX}, s{sT0}")
    a(f"v_lshrrev_b32 v{vX + 1}, 4, v1")
    a(f"v_and_b32 v{vX + 2}, 7, v1")
    a(f"v_xor_b32 v{vX + 3}, v{vX + 2}, v{vX + 1}")
    a(f"v_lshl_add_u32 v{vA0}, v{vX + 3}, 4, v{vX}")
    a(f"v_xor_b32 v{vX + 3}, 4, v{vX + 3}")
    a(f"v_lshl_add_u32 v{vA1}, v{vX + 3}, 4, v{vX}")
    a(f"v_add_u32 v{vA1}, {8 * 1152}, v{vA1}")
    a(f"v_lshrrev_b32 v{vX}, 3, v1")
    a(f"v_mul_lo_u32 v{vX}, v{vX}, s{sT0}")
    a(f"v_bfe_u32 v{vX + 1}, v1, 4, 1")
    a(f"v_lshlrev_b32 v{vX + 1}, 2, v{vX + 1}")
    a(f"v_xor_b32 v{vX + 1}, v{vX + 1}, v{vX + 2}")
    a(f"v_lshl_add_u32 v{vW}, v{vX + 1}, 4, v{vX}")
    a(f"s_lshl_b32 s{sT0}, s{sCp}, 7")
    a(f"v_add_u32 v{vW}, s{sT0}, v{vW}")
    a(f"v_and_b32 v{vX}, 31, v1")
    a(f"s_and_b32 s{sT0}, s{sW}, 3")
    a(f"s_lshl_b32 s{sT0}, s{sT0}, 5")
    a(f"v_add_u32 v{vX + 1}, s{sT0}, v{vX}")
    a(f"v_lshlrev_b32 v{vX + 1}, 7, v{vX + 1}")
    a(f"v_add_u32 v{vX + 1}, {ACT0}, v{vX + 1}")
    a(f"v_bfe_u32 v{vX + 2}, v1, 1, 3")
    a(f"v_lshrrev_b32 v{vX + 3}, 5, v1")
    for t in range(4):
        a(f"v_add_u32 v{vX + 4}, {2 * t}, v{vX + 3}")
        a(f"v_xor_b32 v{vX + 4}, v{vX + 4}, v{vX + 2}")
        a(f"v_lshl_add_u32 v{vRA + t}, v{vX + 4}, 4, v{vX + 1}")
    a(f"v_bfe_u32 v{vX}, v1, 2, 2")
    a(f"v_lshrrev_b32 v{vX + 1}, 5, v1")
    a(f"v_lshl_add_u32 v{vX + 1}, v{vX + 1}, 3, v{vX}")
    a(f"v_lshlrev_b32 v{vX + 1}, 7, v{vX + 1}")
    a(f"v_bfe_u32 v{vX + 2}, v1, 4, 1")
    a(f"v_bfe_u32 v{vX + 3}, v1, 1, 1")
    a(f"v_lshl_add_u32 v{vX + 2}, v{vX + 2}, 1, v{vX + 3}")
    a(f"s_lshr_b32 s{sT0}, s{sW}, 2")
    a(f"s_lshl_b32 s{sT0}, s{sT0}, 2")
    a(f"v_add_u32 v{vX + 2}, s{sT0}, v{vX + 2}")
    a(f"v_bfe_u32 v{vX + 3}, v1, 3, 1")
    a(f"v_lshlrev_b32 v{vX + 3}, 2, v{vX + 3}")
    a(f"v_xor_b32 v{vX + 2}, v{vX + 2}, v{vX + 3}")
    a(f"v_lshl_add_u32 v{vX + 1}, v{vX + 2}, 4, v{vX + 1}")
    a(f"v_and_b32 v{vX + 2}, 1, v1")
    a(f"v_lshl_add_u32 v{vRW}, v{vX + 2}, 3, v{vX + 1}")
    a(f"v_add_u32 v{vRW2}, 0x10000, v{vRW}")
    a(f"s_lshl_b32 s{sM0a}, s{sW}, 11")
    a(f"s_add_u32 s{sM0a}, s{sM0a}, {ACT0}")
    a(f"s_mov_b32 s{sAoff}, 0")

    def act_dma(buf):
        for j in range(2):
            a(f"s_add_u32 m0, s{sM0a}, {buf * 16384 + j * 1024}")
            a("s_nop 0")
            a(f"buffer_load_dwordx4 v{vA0 + j}, {sr(sX, 4)}, s{sAoff} offen lds")
        a(f"s_add_u32 s{sAoff}, s{sAoff}, 128")

    lkv, lw = a.newlabel("AP_KV"), a.newlabel("AP_W")
    a(f"s_cmp_eq_u32 s{sCp}, 9")
    a(f"s_cbranch_scc1 {lkv}")
    a(f"s_mul_i32 s{sT1}, s{sW}, {8 * 1152}")
    for j in range(9):
        a(f"s_lshl_b32 s{sT0}, s{sW}, 10")
        a(f"s_add_u32 m0, s{sT0}, {j * 8192}")
        a(f"s_add_u32 s{sT0}, s{sT1}, {j * 64 * 1152}")
        a(f"buffer_load_dwordx4 v{vW}, {sr(sWQ, 4)}, s{sT0} offen lds")
    a(f"s_branch {lw}")
    a.label(lkv)
    DK, DV = 64, 80
    for it in range(11):
        a(f"v_add_u32 v{vX}, {512 * it}, v0")
        a(f"v_lshlrev_b32 v{vX}, 2, v{vX}")
        a(f"buffer_load_dword v{DK + it}, v{vX}, {sr(sWK, 4)}, 0 offen")
        a(f"buffer_load_dword v{DV + it}, v{vX}, {sr(sWV, 4)}, 0 offen")
    for i in range(4):
        a(f"v_mov_b32 v{F0 + i}, 0")
    a(f"v_lshlrev_b32 v{vX}, 4, v0")
    for i in range(8):
        a(f"ds_write_b128 v{vX}, {vr(F0, 4)} offset:{i * 8192}")
    a(f"v_add_u32 v{vX}, 0x10000, v{vX}")
    a(f"ds_write_b128 v{vX}, {vr(F0, 4)}")
    a("s_waitcnt lgkmcnt(0)")
    a("s_barrier")
    a(f"s_movk_i32 s{sT0}, 7282")
    a(f"s_movk_i32 s{sT1}, 5184")
    for it in range(11):
        idx, k, j, ad = vX, vX + 1, vX + 2, vX + 3
        a(f"v_add_u32 v{idx}, {512 * it}, v0")
        a(f"v_mul_lo_u32 v{k}, v{idx}, s{sT0}")
        a(f"v_lshrrev_b32 v{k}, 16, v{k}")
        a(f"v_mul_u32_u24 v{j}, 9, v{k}")
        a(f"v_sub_u32 v{j}, v{idx}, v{j}")
        a(f"v_bfe_u32 v{ad}, v{k}, 1, 1")
        a(f"v_lshlrev_b32 v{ad}, 2, v{ad}")
        a(f"v_lshrrev_b32 v{vX + 4}, 2, v{j}")
        a(f"v_xor_b32 v{ad}, v{ad}, v{vX + 4}")
        a(f"v_lshlrev_b32 v{ad}, 4, v{ad}")
        a(f"v_lshl_add_u32 v{ad}, v{k}, 7, v{ad}")
        a(f"v_and_b32 v{j}, 3, v{j}")
        a(f"v_lshl_add_u32 v{ad}, v{j}, 2, v{ad}")
        a(f"v_xor_b32 v{vX + 4}, 64, v{ad}")
        if it == 0:
            a("s_waitcnt vmcnt(0)")
        if it == 10:
            a(f"v_cmp_gt_u32 vcc, s{sT1}, v{idx}")
            a(f"s_and_saveexec_b64 {sr(sEx, 2)}, vcc")
        a(f"ds_write_b32 v{ad}, v{DK + it}")
        a(f"ds_write_b32 v{vX + 4}, v{DV + it}")
        if it == 10:
            a(f"s_mov_b64 exec, {sr(sEx, 2)}")
    a("s_waitcnt lgkmcnt(0)")
    a.label(lw)
    for s in range(5):
        act_dma(s)
    lV, lE = a.newlabel("AP_V"), a.newlabel("AP_E")
    a(f"s_cmp_eq_u32 s{sCp}, 9")
    a(f"s_cselect_b32 s{sT1}, s{sW}, 0")
    a(f"s_cmp_ge_u32 s{sT1}, 4")
    a(f"s_cbranch_scc1 {lV}")

    FS = [20, 28, 36, 96]
    def reads(F, s, t):
        if (s % 5) < 4:
            a(f"ds_read_b128 {vr(F, 4)}, v{vRA + t} offset:{(s % 5) * 16384}")
        else:
            a(f"v_add_u32 v{vX + t}, 0x10000, v{vRA + t}")
            a(f"ds_read_b128 {vr(F, 4)}, v{vX + t}")
        for j in range(2):
            off = (64 * s + 16 * t + 4 * j) * 128
            if off < 65536:
                a(f"ds_read_b64_tr_b16 {vr(F + 4 + 2 * j, 2)}, v{vRW} offset:{off}")
            else:
                a(f"ds_read_b64_tr_b16 {vr(F + 4 + 2 * j, 2)}, v{vRW2} offset:{off - 65536}")
    for vvar in (False, True):
        if vvar:
            a.label(lV)
        for s in range(9):
            rem = (min(8, max(4, s + 3)) - s) * 2
            a(f"s_waitcnt vmcnt({rem})")
            a("s_barrier")
            if s == 0 and after_first_barrier:
                after_first_barrier()
            for t in range(4):
                reads(FS[t], s, t)
            if s >= 1 and s + 4 < 9:
                act_dma((s + 4) % 5)
            for t in range(4):
                F = FS[t]
                a(f"s_waitcnt lgkmcnt({3 * (3 - t)})")
                A, B = (F, F + 4) if vvar else (F + 4, F)
                mfma(a, ACC, A, B, "0" if (s == 0 and t == 0) else None)
        if not vvar:
            a(f"s_branch {lE}")
    a.label(lE)
    a("s_nop 15")
    lq, ldone = a.newlabel("AP_Q"), a.newlabel("AP_D")
    a(f"s_cmp_lg_u32 s{sCp}, 9")
    a(f"s_cbranch_scc1 {lq}")
    for i in range(8):
        a(f"v_cvt_pk_bf16_f32 v{F0 + i}, v{ACC + 2 * i}, v{ACC + 2 * i + 1}")
    lk, lk0 = a.newlabel("AP_K"), a.newlabel("AP_K")
    a(f"s_cmp_ge_u32 s{sW}, 4")
    a(f"s_cbranch_scc1 {lk0}")
    a(f"v_mov_b32 v{vX}, 0")
    for i in range(8):
        a(f"v_lshlrev_b32 v{vX + 1}, 16, v{F0 + i}")
        a(f"v_and_b32 v{vX + 2}, 0xffff0000, v{F0 + i}")
        a(f"v_fmac_f32 v{vX}, v{vX + 1}, v{vX + 1}")
        a(f"v_fmac_f32 v{vX}, v{vX + 2}, v{vX + 2}")
    a(f"v_mov_b32 v{vX + 1}, v{vX}")
    a("s_nop 1")
    a(f"v_permlane32_swap_b32 v{vX}, v{vX + 1}")
    a("s_nop 1")
    a(f"v_add_f32 v{vX}, v{vX}, v{vX + 1}")
    a(f"v_and_b32 v{vX}, 0x7fffffff, v{vX}")
    for off in (0x041F, 0x081F, 0x101F, 0x201F, 0x401F):
        a(f"ds_swizzle_b32 v{vX + 1}, v{vX} offset:{off:#x}")
        a("s_waitcnt lgkmcnt(0)")
        a(f"v_max_u32 v{vX}, v{vX}, v{vX + 1}")
    a(f"s_lshl_b32 s{sT0}, s{sRt}, 2")
    a(f"s_add_u32 s{sT0}, s{sT0}, s{sW}")
    a(f"s_lshl_b32 s{sT0}, s{sT0}, 2")
    a(f"s_add_u32 s{sT0}, s{sT0}, {WS_FLAG + FLG_KN}")
    a(f"v_mov_b32 v{vX + 1}, 0")
    a("s_mov_b64 exec, 1")
    a(f"buffer_store_dword v{vX}, v{vX + 1}, {sr(sWS, 4)}, s{sT0} offen sc1")
    a("s_mov_b64 exec, -1")
    a(f"s_mov_b32 s{sT1}, {WS_KAF}")
    a(f"s_branch {lk}")
    a.label(lk0)
    a(f"s_mov_b32 s{sT1}, {WS_VAF}")
    a(f"v_and_b32 v{vX}, 27, v1")
    a(f"v_cmp_eq_u32 vcc, 18, v{vX}")
    a(f"v_mov_b32 v{vX + 1}, 0x3f803f80")
    a("s_nop 0")
    for i in range(8):
        a(f"v_cndmask_b32 v{F0 + i}, v{F0 + i}, v{vX + 1}, vcc")
    a.label(lk)
    a(f"s_lshl_b32 s{sT0}, s{sRt}, 2")
    a(f"s_and_b32 s{sM0a}, s{sW}, 3")
    a(f"s_add_u32 s{sT0}, s{sT0}, s{sM0a}")
    a(f"s_lshl_b32 s{sT0}, s{sT0}, 11")
    a(f"s_add_u32 s{sT0}, s{sT0}, s{sT1}")
    a(f"v_lshlrev_b32 v{vX}, 4, v1")
    a(f"buffer_store_dwordx4 {vr(F0, 4)}, v{vX}, {sr(sWS, 4)}, s{sT0} offen{gen.st_flags()}")
    a(f"buffer_store_dwordx4 {vr(F0 + 4, 4)}, v{vX}, {sr(sWS, 4)}, s{sT0} offen offset:1024{gen.st_flags()}")
    a(f"s_branch {ldone}")
    a.label(lq)
    a(f"s_mov_b32 s{sT0}, {f32bits(C_A):#x}")
    for i in range(16):
        a(f"v_mul_f32 v{ACC + i}, s{sT0}, v{ACC + i}")
    for i in range(8):
        a(f"v_cvt_pk_bf16_f32 v{F0 + i}, v{ACC + 2 * i}, v{ACC + 2 * i + 1}")
    a(f"v_and_b32 v{vX}, 31, v1")
    a(f"s_lshl_b32 s{sT0}, s{sRt}, 7")
    a(f"s_and_b32 s{sT1}, s{sW}, 3")
    a(f"s_lshl_b32 s{sT1}, s{sT1}, 5")
    a(f"s_add_u32 s{sT0}, s{sT0}, s{sT1}")
    a(f"v_add_u32 v{vX}, s{sT0}, v{vX}")
    a(f"s_movk_i32 s{sT0}, 1152")
    a(f"v_mul_lo_u32 v{vX}, v{vX}, s{sT0}")
    a(f"v_lshrrev_b32 v{vX + 1}, 5, v1")
    a(f"v_lshl_add_u32 v{vX}, v{vX + 1}, 3, v{vX}")
    a(f"s_lshl_b32 s{sT0}, s{sCp}, 7")
    a(f"s_lshr_b32 s{sT1}, s{sW}, 2")
    a(f"s_lshl_b32 s{sT1}, s{sT1}, 6")
    a(f"s_add_u32 s{sT0}, s{sT0}, s{sT1}")
    a(f"s_add_u32 s{sT0}, s{sT0}, {WS_QA}")
    for g in range(4):
        a(f"buffer_store_dwordx2 {vr(F0 + 2 * g, 2)}, v{vX}, {sr(sWS, 4)}, s{sT0} offen offset:{16 * g}{gen.st_flags()}")
    a.label(ldone)


def phase_attnA(a, s_task, part=None, nstores=0, sig=None):
    sWS = SRD3
    real_a = a
    if part == 'main':
        a = Asm()
    make_srd(a, sWS, P_WS, WS_BYTES)
    sW = S_WAVE
    sHead, sQb, sT0, sT1, sKoff, sRing, sN, sMask, sEx = S_T, S_T + 1, S_T + 2, S_T + 3, S_T + 4, S_T + 5, S_T + 6, S_T + 7, S_T + 8
    a(f"s_and_b32 s{sHead}, s{s_task}, 3")
    a(f"s_lshl_b32 s{sHead}, s{sHead}, 3")
    a(f"s_add_u32 s{sHead}, s{sHead}, s{sW}")
    a(f"s_lshr_b32 s{sQb}, s{s_task}, 2")
    vL16, vCur, vNxt, vPrv, vAd, vT, vAcc = 2, 3, 4, 5, 6, 7, 10
    vE = 12
    vQ, vO, vS0, vS1, vP0, vP1, vN, FR = 16, 32, 48, 64, 80, 88, 96, 112
    a(f"v_lshlrev_b32 v{vL16}, 4, v1")
    a(f"s_lshl_b32 s{sKoff}, s{sW}, 11")
    a(f"s_add_u32 s{sKoff}, s{sKoff}, {WS_KAF}")
    a(f"s_mov_b32 s{sRing}, 0")
    a(f"s_mov_b32 s{sMask}, 0x40004000")

    def dma_groups():
        return [[f"s_lshl_b32 s{sT1}, s{sW}, 11", f"s_add_u32 m0, s{sRing}, s{sT1}", "s_nop 0",
                 f"buffer_load_dwordx4 v{vL16}, {sr(sWS, 4)}, s{sKoff} offen lds"],
                [f"buffer_load_dwordx4 v{vL16}, {sr(sWS, 4)}, s{sKoff} offen offset:1024 lds"],
                [f"s_add_u32 s{sT0}, s{sRing}, s{sT1}", f"s_add_u32 m0, s{sT0}, 16384", f"s_add_u32 s{sT0}, s{sKoff}, {WS_VAF - WS_KAF}",
                 f"buffer_load_dwordx4 v{vL16}, {sr(sWS, 4)}, s{sT0} offen lds"],
                [f"buffer_load_dwordx4 v{vL16}, {sr(sWS, 4)}, s{sT0} offen offset:1024 lds",
                 f"s_add_u32 s{sKoff}, s{sKoff}, 16384", f"s_add_u32 s{sRing}, s{sRing}, 32768", f"s_and_b32 s{sRing}, s{sRing}, 0x1ffff"]]
    a(f"v_and_b32 v{vAd}, 31, v1")
    a(f"s_lshl_b32 s{sT0}, s{sQb}, 5")
    a(f"v_add_u32 v{vAd}, s{sT0}, v{vAd}")
    a(f"s_movk_i32 s{sT0}, 1152")
    a(f"v_mul_lo_u32 v{vAd}, v{vAd}, s{sT0}")
    a(f"v_lshrrev_b32 v{vT}, 5, v1")
    a(f"v_lshl_add_u32 v{vT + 1}, v{vT}, 3, v{vAd}")
    a(f"s_mul_i32 s{sT0}, s{sHead}, 36")
    a(f"s_add_u32 s{sT0}, s{sT0}, {WS_QA}")
    a(f"buffer_load_dwordx2 {vr(vQ, 2)}, v{vT + 1}, {sr(sWS, 4)}, s{sT0} offen")
    a(f"buffer_load_dwordx2 {vr(vQ + 2, 2)}, v{vT + 1}, {sr(sWS, 4)}, s{sT0} offen offset:16")
    a(f"buffer_load_dword v{vQ + 4}, v{vAd}, {sr(sWS, 4)}, s{sT0} offen offset:32")
    for _ in range(3):
        for g in dma_groups():
            for x in g:
                a(x)
    if part == 'pro':
        return
    a = real_a
    for i in range(16):
        a(f"v_mov_b32 v{vO + i}, 0")
    for i in range(8):
        a(f"v_mov_b32 v{vP1 + i}, 0")
    for i in range(5, 8):
        a(f"v_mov_b32 v{vQ + i}, 0")
    a(f"v_mov_b32 v{vCur}, v{vL16}")
    a(f"v_mov_b32 v{vPrv}, v{vL16}")
    a(f"v_add_u32 v{vNxt}, 32768, v{vL16}")
    a(f"v_cmp_gt_u32 vcc, 32, v1")
    a(f"s_waitcnt vmcnt({8 + nstores})")
    a("s_nop 0")
    a(f"v_cndmask_b32 v{vQ + 4}, 0, v{vQ + 4}, vcc")
    a("s_barrier")
    a(f"ds_read_b128 {vr(FR, 4)}, v{vCur}")
    a(f"ds_read_b128 {vr(FR + 4, 4)}, v{vCur} offset:1024")
    a("s_waitcnt lgkmcnt(0)")
    mfma(a, vS0, FR, vQ, "0")
    mfma(a, vS0, FR + 4, vQ + 4)
    a("s_nop 15")

    def rowmax(S):
        a(f"v_max3_f32 v{vT}, v{S}, v{S + 1}, v{S + 2}")
        for i in range(3, 15, 2):
            a(f"v_max3_f32 v{vT}, v{vT}, v{S + i}, v{S + i + 1}")
        a(f"v_max_f32 v{vT}, v{vT}, v{S + 15}")
        a(f"v_mov_b32 v{vT + 1}, v{vT}")
        a("s_nop 1")
        a(f"v_permlane32_swap_b32 v{vT}, v{vT + 1}")
        a("s_nop 1")
        a(f"v_max_f32 v{vT}, v{vT}, v{vT + 1}")
        a(f"v_add_f32 v{vT}, {f32bits(T_OFF):#x}, v{vT}")
    rowmax(vS0)
    for i in range(16):
        a(f"v_sub_f32 v{vN + i}, 0, v{vT}")
        a(f"v_sub_f32 v{vS0 + i}, v{vS0 + i}, v{vT}")
    D = 4

    def frag_addr(j, i):
        nxt = j >= 8
        j %= 8
        if i < 2:
            kb = j + 1
            if kb == 8:
                return ("NN" if nxt else vNxt, i * 1024)
            return (vNxt if nxt else vCur, kb * 2048 + i * 1024)
        kb = j - 1
        if kb < 0:
            return (vCur if nxt else vPrv, 16384 + 7 * 2048 + (i - 2) * 1024)
        return (vNxt if nxt else vCur, 16384 + kb * 2048 + (i - 2) * 1024)

    def frag_read(j, i):
        r, off = frag_addr(j, i)
        assert r != "NN"
        a(f"ds_read_b128 {vr(FR + 4 * ((4 * j + i) % 8), 4)}, v{r} offset:{off}")

    for i in range(4):
        frag_read(0, i)
    slow = []

    def sm_ops(R):
        ops = []
        for p in range(8):
            e = vE + 2 * (p & 1)
            ops.append([f"v_exp_f32 v{e}, v{R['Sc'] + 2 * p}", f"v_exp_f32 v{e + 1}, v{R['Sc'] + 2 * p + 1}"])
        return ops

    def sm_plain(R):
        for p in range(8):
            e = vE + 2 * (p & 1)
            a(f"v_exp_f32 v{e}, v{R['Sc'] + 2 * p}")
            a(f"v_exp_f32 v{e + 1}, v{R['Sc'] + 2 * p + 1}")
            a("s_nop 0")
            a(f"v_cvt_pk_bf16_f32 v{R['Pc'] + p}, v{e}, v{e + 1}")

    lLoop = a.newlabel("AA_LOOP")
    a(f"s_mov_b32 s{sN}, 0")
    a.label(lLoop)
    for j in range(8):
        R = dict(Sc=vS0, Sn=vS1, Pc=vP0, Pp=vP1) if (j & 1) == 0 else dict(Sc=vS1, Sn=vS0, Pc=vP1, Pp=vP0)
        lslow, lback = a.newlabel("AA_SLOW"), a.newlabel("AA_BACK")
        extra = {i: [] for i in range(4)}
        if j == 4:
            l0 = a.newlabel("AA_W")
            l00 = a.newlabel("AA_W")
            extra[0] = [f"s_cmp_lt_u32 s{sN}, 2", f"s_cbranch_scc1 {l00}", f"s_cmp_lt_u32 s{sN}, 6", f"s_cbranch_scc1 {l0}", "s_waitcnt vmcnt(0)", f"{l0}:", "s_waitcnt vmcnt(4)",
                        f"{l00}:", f"s_waitcnt vmcnt({4 + nstores})", "s_barrier"]
            if sig:
                extra[0].append("@SIG")
        if j == 5:
            l1 = a.newlabel("AA_W")
            g = dma_groups()
            extra[0] = [f"s_cmp_ge_u32 s{sN}, 5", f"s_cbranch_scc1 {l1}"] + g[0] + g[1] + g[2] + g[3] + [f"{l1}:"]
        for i in range(4):
            if i % 2 == 0:
                a(f"s_waitcnt lgkmcnt({D - 2})")
            fr = FR + 4 * ((4 * j + i) % 8)
            if i < 2:
                mfma(a, R['Sn'], fr, vQ + 4 * i, vN if i == 0 else None)
            else:
                mfma(a, vO, fr, R['Pp'] + 4 * (i - 2))
            for x in extra[i]:
                if x == "@SIG":
                    ls = a.newlabel("AA_S")
                    a(f"s_cmp_lg_u32 s{sN}, 2")
                    a(f"s_cbranch_scc1 {ls}")
                    sig()
                    a.label(ls)
                elif x.endswith(":"):
                    a.label(x[:-1])
                else:
                    a(x)
            frag_read(j + 1, i)
            for p in (2 * i, 2 * i + 1):
                e = vE + 2 * (p & 1)
                a(f"v_exp_f32 v{e}, v{R['Sc'] + 2 * p}")
                a(f"v_exp_f32 v{e + 1}, v{R['Sc'] + 2 * p + 1}")
                if p & 1:
                    e0 = vE
                    a(f"v_cvt_pk_bf16_f32 v{R['Pc'] + p - 1}, v{e0}, v{e0 + 1}")
                    a(f"v_cvt_pk_bf16_f32 v{R['Pc'] + p}, v{e}, v{e + 1}")
                    if i == 0:
                        a(f"v_or_b32 v{vAcc}, v{R['Pc'] + p - 1}, v{R['Pc'] + p}")
                    else:
                        a(f"v_or3_b32 v{vAcc}, v{vAcc}, v{R['Pc'] + p - 1}, v{R['Pc'] + p}")
        a(f"v_and_b32 v{vAcc}, s{sMask}, v{vAcc}")
        a(f"v_cmp_ne_u32 vcc, 0, v{vAcc}")
        if j == 7:
            a(f"s_add_u32 s{sN}, s{sN}, 1")
            a(f"s_add_u32 s{sT0}, s{sN}, 1")
            a(f"s_and_b32 s{sT0}, s{sT0}, 3")
            a(f"s_lshl_b32 s{sT0}, s{sT0}, 15")
            a(f"v_mov_b32 v{vPrv}, v{vCur}")
            a(f"v_mov_b32 v{vCur}, v{vNxt}")
            a(f"v_add_u32 v{vNxt}, s{sT0}, v{vL16}")
        a(f"s_cbranch_vccnz {lslow}")
        a.label(lback)
        slow.append((R, lslow, lback))
    a(f"s_cmp_lt_u32 s{sN}, 8")
    a(f"s_cbranch_scc1 {lLoop}")
    a("s_waitcnt lgkmcnt(0)")
    mfma(a, vO, FR + 8, vP1)
    mfma(a, vO, FR + 12, vP1 + 4)
    a("s_nop 15")
    a(f"v_rcp_f32 v{vT}, v{vO + 10}")
    a("s_nop 0")
    for i in range(10):
        a(f"v_mul_f32 v{vO + i}, v{vO + i}, v{vT}")
    for i in range(5):
        a(f"v_cvt_pk_bf16_f32 v{vP0 + i}, v{vO + 2 * i}, v{vO + 2 * i + 1}")
    a(f"v_lshrrev_b32 v{vT}, 5, v1")
    a(f"v_lshl_add_u32 v{vT + 1}, v{vT}, 3, v{vAd}")
    a(f"s_mul_i32 s{sT0}, s{sHead}, 36")
    a(f"s_add_u32 s{sT0}, s{sT0}, {WS_CTXA}")
    a(f"buffer_store_dwordx2 {vr(vP0, 2)}, v{vT + 1}, {sr(sWS, 4)}, s{sT0} offen")
    a(f"buffer_store_dwordx2 {vr(vP0 + 2, 2)}, v{vT + 1}, {sr(sWS, 4)}, s{sT0} offen offset:16")
    a(f"v_cmp_gt_u32 vcc, 32, v1")
    a(f"s_and_saveexec_b64 {sr(sEx, 2)}, vcc")
    a(f"buffer_store_dword v{vP0 + 4}, v{vAd}, {sr(sWS, 4)}, s{sT0} offen offset:32")
    a(f"s_mov_b64 exec, {sr(sEx, 2)}")
    lEnd = a.newlabel("AA_END")
    a(f"s_branch {lEnd}")
    for (R, lab, back) in slow:
        a.label(lab)
        a("s_nop 15")
        rowmax(R['Sc'])
        a(f"v_max_f32 v{vT}, 0, v{vT}")
        for i in range(16):
            a(f"v_sub_f32 v{vN + i}, v{vN + i}, v{vT}")
            a(f"v_sub_f32 v{R['Sc'] + i}, v{R['Sc'] + i}, v{vT}")
            a(f"v_sub_f32 v{R['Sn'] + i}, v{R['Sn'] + i}, v{vT}")
        a(f"v_exp_f32 v{vT + 1}, -v{vT}")
        a("s_nop 0")
        for i in range(16):
            a(f"v_mul_f32 v{vO + i}, v{vO + i}, v{vT + 1}")
        sm_plain(R)
        a("s_nop 1")
        a(f"s_branch {back}")
    a.label(lEnd)
```

```python
from gen import *
import gen
from attnb2 import *
from parta import phase_aproj
from outp import *
from mega import *
from outg import *
FUSED = True
def fused2(a):
    stamp(a, 0)
    stamp(a, 5, True)
    rstamp(a, 0); rstamp(a, 0, "R2"); rstamp(a, 0, "R3")
    epoch_begin(a)
    lq = a.newlabel("F_NOAP")
    a("s_cmp_ge_u32 s2, 160")
    a(f"s_cbranch_scc1 {lq}")
    phase_aproj(a, 2)
    a("s_barrier")
    a.label(lq)
    rstamp(a, 1)
    def sig_ap():
        l = a.newlabel("F_S")
        a("s_cmp_ge_u32 s2, 160")
        a(f"s_cbranch_scc1 {l}")
        a(f"s_lshl_b32 s10, s2, 3")
        a(f"s_add_u32 s10, s10, {FLG_AP}")
        flag_set(a, 10, 120)
        a.label(l)
    def wait_ap():
        flag_wait(a, (FLG_AP,), 160, 112, 10)
    A0, QP = AttnA(a, 0), QProj(a)
    def p2_pro():
        l1, l2 = a.newlabel("P2"), a.newlabel("P2")
        a(f"s_cmp_ge_u32 s{S_WAVE}, 4")
        a(f"s_cbranch_scc1 {l1}")
        A0.prologue()
        a(f"s_branch {l2}")
        a.label(l1)
        QP.setup()
        for h in range(4):
            QP.dma(h)
        a.label(l2)
    def kv_hook(s):
        if s == 2: warm_q(a, 100, 0)
        if s == 3: warm_q(a, 100, 1)
    phase_kv(a, 2, sig_ap, wait_ap, p2_pro, hold=True, stage_hook=kv_hook)
    stamp(a, 1)
    rstamp(a, 5); rstamp(a, 1, "R2")
    lG, lJ = a.newlabel("P2G"), a.newlabel("P2J")
    a(f"s_cmp_ge_u32 s{S_WAVE}, 4")
    a(f"s_cbranch_scc1 {lG}")
    A0.main(None, trickle=True)
    a(f"s_lshl_b32 s{A0.sT0}, s{S_WAVE}, 13")
    a(f"s_add_u32 s{A0.sT0}, s{A0.sT0}, {QProj.HAND}")
    a(f"v_add_u32 v3, s{A0.sT0}, v{A0.vL16}")
    for t in range(8):
        a(f"ds_read_b128 {vr(16 + 4 * t, 4)}, v3 offset:{t * 1024}")
    a(f"s_branch {lJ}")
    a.label(lG)
    def q_hook(m):
        if m == 20:
            rstamp(a, 2, "R2")
            a(f"s_and_b32 s9, s2, 31")
            a(f"s_lshl_b32 s9, s9, 7")
            a(f"s_lshr_b32 s10, s2, 5")
            a(f"s_lshl_b32 s10, s10, 3")
            a(f"s_add_u32 s10, s10, s9")
            flag_set(a, 10, 120)
        if m == 24:
            rstamp(a, 3, "R2")
            flag_wait(a, 9, 8, 120, 10)
            rstamp(a, 4, "R2")
        if m == 25:
            attnB_kv_prologue(a, QP.vL16, QP.sT0, QP.sT1, QP.sAoff, (0, 1))
    QP.main(q_hook)
    a.label(lJ)
    stamp(a, 2)
    rstamp(a, 6); rstamp(a, 5, "R2")
    attnB_main(a)
    rstamp(a, 6, "R2"); rstamp(a, 1, "R3")
    stamp(a, 4)
    NB_MIN = 34
    lG, lJ, lEnd = a.newlabel("P4G"), a.newlabel("P4J"), a.newlabel("P4E")
    a(f"s_cmp_ge_u32 s{S_WAVE}, 4")
    a(f"s_cbranch_scc1 {lG}")
    A1 = AttnA(a, 1)
    a("s_waitcnt vmcnt(0)")
    A1.prologue(2)
    a("s_barrier")
    A1.main()
    a("s_waitcnt vmcnt(0)")
    a("s_barrier")
    a(f"s_lshl_b32 s10, s2, 3")
    a(f"s_add_u32 s10, s10, {FLG_CA + 2048}")
    flag_set(a, 10, 120, wave=0)
    lw = a.newlabel("P4W")
    a.label(lw)
    a(f"v_mov_b32 v3, {L_CTL + 4}")
    a("ds_read_b32 v4, v3")
    a("s_waitcnt lgkmcnt(0)")
    a("v_readfirstlane_b32 s10, v4")
    a("s_nop 3")
    a("s_cmp_lg_u32 s10, 0")
    a(f"s_cbranch_scc1 {lEnd}")
    a("s_barrier")
    a(f"s_branch {lw}")
    a.label(lG)
    G = OutG(a)
    a("s_barrier")
    G.ids()
    a(f"s_mov_b32 s{G.sB}, 0")
    a("v_mov_b32 v56, 0")
    a("v_mov_b32 v57, 0")
    a(f"v_mov_b32 v58, {L_CTL}")
    a("ds_write_b64 v58, v[56:57]")
    a("s_waitcnt lgkmcnt(0)")
    G.barrier(); G.barrier()
    a("s_waitcnt vmcnt(0)")
    G.barrier()
    a(f"s_and_b32 s9, s2, 31")
    a(f"s_lshr_b32 s11, s2, 5")
    a(f"s_lshl_b32 s10, s11, 5")
    a(f"s_add_u32 s10, s10, s9")
    a(f"s_lshl_b32 s10, s10, 3")
    a(f"s_add_u32 s10, s10, {FLG_CB}")
    flag_set(a, 10, 120)
    a(f"s_sub_u32 s10, 15, s11")
    a(f"s_lshl_b32 s10, s10, 5")
    a(f"s_add_u32 s10, s10, s9")
    a(f"s_lshl_b32 s10, s10, 3")
    a(f"s_add_u32 s10, s10, {FLG_CB}")
    flag_set(a, 10, 124)
    a(f"s_lshl_b32 s10, s2, 3")
    a(f"s_add_u32 s10, s10, {FLG_CA}")
    flag_set(a, 10, 128)

    def poll(s_off, n, inv=False):
        lp = a.newlabel("PL")
        a(f"s_mov_b32 s11, 0")
        a.label(lp)
        flag_issue(a, s_off, n, 56)
        G.barrier(); G.barrier()
        flag_eval(a, n, 56, L_CTL, 11, inv)
        G.barrier()
        a(f"v_mov_b32 v56, {L_CTL}")
        a("ds_read_b32 v57, v56")
        a("s_waitcnt lgkmcnt(0)")
        a("v_readfirstlane_b32 s10, v57")
        a("s_nop 3")
        a("s_cmp_eq_u32 s10, 0")
        a(f"s_cbranch_scc1 {lp}")

    def clear_go():
        l = only_sync_begin(a)
        a("v_mov_b32 v56, 0")
        a(f"v_mov_b32 v57, {L_CTL}")
        a("ds_write_b32 v57, v56")
        a("s_waitcnt lgkmcnt(0)")
        a.label(l)

    lA, lDone, lTail = a.newlabel("P4A"), a.newlabel("P4D"), a.newlabel("P4T")
    a(f"s_cmp_ge_u32 s{G.sIdx}, 24")
    a(f"s_cbranch_scc1 {lA}")
    G.setup_B()
    G.zero_acc()
    a(f"s_lshl_b32 s9, s{G.sRt}, 8")
    a(f"s_lshl_b32 s10, s{G.sSplit}, 6")
    a(f"s_add_u32 s9, s9, s10")
    a(f"s_add_u32 s9, s9, {FLG_CB}")
    poll(9, 8)
    rstamp(a, 2, "R3")
    G.run_B()
    rstamp(a, 3, "R3")
    clear_go()
    G.publish()
    G.barrier(); G.barrier()
    a("s_waitcnt vmcnt(0)")
    G.barrier()
    a(f"s_lshl_b32 s9, s{G.sTile}, 5")
    a(f"s_add_u32 s9, s9, {FLG_PT}")
    a(f"s_lshl_b32 s10, s{G.sSplit}, 3")
    a(f"s_add_u32 s10, s10, s9")
    flag_set(a, 10, 56)
    rstamp(a, 4, "R3")
    poll(9, 4)
    rstamp(a, 5, "R3")
    G.gather()
    a(f"s_branch {lDone}")
    a.label(lA)
    a(f"s_cmp_ge_u32 s{G.sIdx}, 30")
    a(f"s_cbranch_scc1 {lDone}")
    G.setup_A()
    G.zero_acc()
    a(f"s_lshl_b32 s9, s{G.sRt}, 7")
    a(f"s_add_u32 s9, s9, {FLG_CA}")
    poll(9, 16, True)
    G.run_straight(9)
    a.label(lDone)
    a("v_mov_b32 v56, 1")
    a(f"v_mov_b32 v57, {L_CTL + 4}")
    a("ds_write_b32 v57, v56")
    a("s_waitcnt lgkmcnt(0)")
    lb = a.newlabel("P4B")
    a.label(lb)
    G.barrier()
    a(f"s_cmp_lt_u32 s{G.sB}, {NB_MIN}")
    a(f"s_cbranch_scc1 {lb}")
    a(f"s_sub_u32 s10, s{G.sIdx}, 24")
    a(f"s_cmp_ge_u32 s10, 6")
    a(f"s_cbranch_scc1 {lEnd}")
    a(f"s_lshl_b32 s9, s{G.sRt}, 7")
    a(f"s_add_u32 s9, s9, {FLG_CA + 2048}")
    flag_wait(a, 9, 16, 56, 10)
    acquire_early(a)
    a("s_waitcnt vmcnt(0)")
    a("s_barrier")
    a(f"s_mov_b32 s{G.sAoff}, {WS_CTXA + 2048 * 576}")
    G.run_straight(9)
    a("s_nop 15")
    G.out_addr(0)
    a(f"s_add_u32 s{G.sT1}, s{G.sT0}, {32 * 2304}")
    G.store_q(0, G.sT0)
    G.store_q(1, G.sT1)
    a.label(lEnd)
    rstamp(a, 6, "R3")
    a("s_waitcnt vmcnt(0)")
    stamp(a, 6, True)
    if 'ls' in DBG:
        a(f"s_lshl_b32 s{S_T}, s2, 3")
        a(f"s_add_u32 s{S_T}, s{S_T}, s{S_WAVE}")
        a(f"s_lshl_b32 s{S_T}, s{S_T}, 8")
        a(f"s_add_u32 s{S_T}, s{S_T}, {gen.WS_STAMP + (1 << 20)}")
        a("v_lshlrev_b32 v2, 2, v1")
        a(f"buffer_store_dword v0, v2, {sr(SRD3, 4)}, s{S_T} offen")
    stamp_flush(a, 7, SRD3)
def make():
    return build([("fused_kernel", 256, 512, 163840, fused2)])
```

```python
import sys, math, struct

NAME = "concat_heads__grouped_kv_mqa__compressed_kv_cla__prompt"

WS_KF = 0
WS_VF = 16 << 20
WS_CTXB = 32 << 20
WS_QA = 48 << 20
WS_KAF = 52 << 20
WS_VAF = 53 << 20
WS_CTXA = 54 << 20
WS_PART = 64 << 20
WS_BYTES = 268435456

LOG2E = 1.4426950408889634
C_A = (18 ** -0.5) * LOG2E
C_B = (128 ** -0.5) * LOG2E
T_OFF = 64.0


def f32bits(x):
    return struct.unpack("<I", struct.pack("<f", x))[0]


class Asm:
    def __init__(self):
        self.lines = []
        self.nlab = 0

    def __call__(self, s):
        for l in s.split("\n"):
            l = l.strip()
            if l:
                self.lines.append("    " + l)

    def label(self, l):
        self.lines.append(l + ":")

    def newlabel(self, base="L"):
        self.nlab += 1
        return f"{base}_{self.nlab}"

    def raw(self, s):
        self.lines.append(s)

    def text(self):
        return "\n".join(self.lines) + "\n"


def vr(b, n=1):
    return f"v{b}" if n == 1 else f"v[{b}:{b + n - 1}]"


def sr(b, n=1):
    return f"s{b}" if n == 1 else f"s[{b}:{b + n - 1}]"


S_PTR = 16
P_AX, P_AWQ, P_AWK, P_AWV, P_AWO, P_BX, P_BC, P_BWQ, P_BWUK, P_BWUV, P_BWO, P_OUT, P_DBG, P_WS = [S_PTR + 2 * i for i in range(14)]
SRD0, SRD1, SRD2, SRD3, SRD4 = 44, 48, 52, 56, 60
S_WAVE = 64
S_T = 66


def load_ptrs(a):
    a("s_load_dwordx16 s[16:31], s[0:1], 0")
    a("s_load_dwordx8 s[32:39], s[0:1], 64")
    a("s_load_dwordx4 s[40:43], s[0:1], 96")


def make_srd(a, srd, ptr, nbytes):
    a(f"s_mov_b32 s{srd}, s{ptr}")
    a(f"s_and_b32 s{srd + 1}, s{ptr + 1}, 0xffff")
    a(f"s_mov_b32 s{srd + 2}, {nbytes}")
    a(f"s_mov_b32 s{srd + 3}, 0x00020000")


def mfma(a, d, A, B, c=None):
    c = d if c is None else c
    cs = "0" if c == "0" else vr(c, 16)
    a(f"v_mfma_f32_32x32x16_bf16 {vr(d, 16)}, {vr(A, 4)}, {vr(B, 4)}, {cs}")


STAMPS = False
WS_STAMP = 200 << 20
S_STAMP = 88
import os
STAMPSET = os.environ.get("STAMPSET", "0")
def stamp(a, i, real=False, sset="0"):
    if STAMPSET.startswith("R"):
        return
    if STAMPS and (real or i == 0 or sset == STAMPSET):
        a(f"{'s_memrealtime' if real else 's_memtime'} {sr(S_STAMP + 2 * i, 2)}")
def rstamp(a, i, sset="R"):
    if STAMPS and STAMPSET == sset:
        a(f"s_memrealtime {sr(S_STAMP + 2 * i, 2)}")
def stamp_flush(a, n, sWS):
    if not STAMPS: return
    a("s_waitcnt lgkmcnt(0)")
    a(f"s_lshl_b32 s{S_T}, s2, 3")
    a(f"s_add_u32 s{S_T}, s{S_T}, s{S_WAVE}")
    a(f"s_lshl_b32 s{S_T}, s{S_T}, 5")
    a(f"s_add_u32 s{S_T}, s{S_T}, {WS_STAMP}")
    a("v_mov_b32 v2, 0")
    for i in range(n):
        a(f"v_mov_b32 v3, s{S_STAMP + 2 * i}")
        a(f"buffer_store_dword v3, v2, {sr(sWS, 4)}, s{S_T} offen offset:{4 * i}")

FUSED = False
SRD_DBG = 4
CNT_KV = 0
CNT_AP = 128
CNT_CB = 132
CNT_CA = 196
CNT_PT = 212
CNT_KN = 240
CTX_FLAGS = ' sc1'
def st_flags():
    return " sc1" if FUSED else ""

def signal(a, s_off, value, s_val=None, vb=254, wave=0):
    l = a.newlabel("SIG")
    a(f"s_cmp_lg_u32 s{S_WAVE}, {wave}")
    a(f"s_cbranch_scc1 {l}")
    a(f"v_mov_b32 v{vb}, {('s%d' % s_val) if s_val is not None else value}")
    a(f"v_mov_b32 v{vb + 1}, {('s%d' % s_off) if not isinstance(s_off, tuple) else s_off[0]}")
    a("s_mov_b64 exec, 1")
    a(f"buffer_atomic_add v{vb}, v{vb + 1}, {sr(SRD_DBG, 4)}, 0 offen")
    a("s_mov_b64 exec, -1")
    a.label(l)

def wait_cnt(a, s_off, shift_sgpr, mask, target, s_tmp, vb=254, wave=0, inv=True):
    l, lp, ld = a.newlabel("WT"), a.newlabel("WT"), a.newlabel("WT")
    a(f"s_cmp_lg_u32 s{S_WAVE}, {wave}")
    a(f"s_cbranch_scc1 {l}")
    a(f"v_mov_b32 v{vb + 1}, {('s%d' % s_off) if not isinstance(s_off, tuple) else s_off[0]}")
    a(f"s_mov_b32 s{s_tmp + 1}, 0")
    a.label(lp)
    a(f"buffer_load_dword v{vb}, v{vb + 1}, {sr(SRD_DBG, 4)}, 0 offen sc1")
    a("s_waitcnt vmcnt(0)")
    a(f"v_readfirstlane_b32 s{s_tmp}, v{vb}")
    if shift_sgpr is not None:
        a(f"s_lshr_b32 s{s_tmp}, s{s_tmp}, s{shift_sgpr}")
    a(f"s_and_b32 s{s_tmp}, s{s_tmp}, {mask:#x}")
    a(f"s_cmp_ge_u32 s{s_tmp}, {target}")
    a(f"s_cbranch_scc1 {ld}")
    a("s_sleep 4")
    a(f"s_add_u32 s{s_tmp + 1}, s{s_tmp + 1}, 1")
    a(f"s_cmp_lt_u32 s{s_tmp + 1}, 0x200000")
    a(f"s_cbranch_scc1 {lp}")
    a.label(ld)
    if inv:
        a("buffer_inv sc1")
    a.label(l)

WS_FLAG = 60 << 20
S_NONCE = 14
SYNCW = 4
CNT_NONCE = 248

def only_sync_begin(a):
    l = a.newlabel("SY")
    a(f"s_cmp_lg_u32 s{S_WAVE}, {SYNCW}")
    a(f"s_cbranch_scc1 {l}")
    return l

FLG_KV = 0
FLG_AP = 4096
FLG_KN = 8192
FLG_CB = 12288
FLG_CA = 32768
FLG_PT = 49152

def epoch_begin(a):
    a(f"s_memrealtime {sr(S_NONCE, 2)}")
    a("s_waitcnt lgkmcnt(0)")

def flag_set(a, s_off, vb, wave=None):
    l = a.newlabel("SY")
    a(f"s_cmp_lg_u32 s{S_WAVE}, {SYNCW if wave is None else wave}")
    a(f"s_cbranch_scc1 {l}")
    a("s_memrealtime s[12:13]")
    a(f"v_mov_b32 v{vb + 2}, s{s_off}")
    a(f"s_mov_b32 s8, {WS_FLAG}")
    a("s_waitcnt lgkmcnt(0)")
    a(f"v_mov_b32 v{vb}, s12")
    a(f"v_mov_b32 v{vb + 1}, s13")
    a("s_mov_b64 exec, 1")
    a(f"buffer_store_dwordx2 {vr(vb, 2)}, v{vb + 2}, {sr(SRD3, 4)}, s8 offen sc1")
    a("s_mov_b64 exec, -1")
    a.label(l)

def flag_wait(a, s_off, n, vb, s_tmp, wave=None):
    l = a.newlabel("SY")
    a(f"s_cmp_lg_u32 s{S_WAVE}, {SYNCW if wave is None else wave}")
    a(f"s_cbranch_scc1 {l}")
    lp, ld = a.newlabel("FW"), a.newlabel("FW")
    nl = (n + 63) // 64
    va = vb + 2 * nl
    a(f"v_lshlrev_b32 v{va}, 3, v1")
    if isinstance(s_off, tuple):
        a(f"v_add_u32 v{va}, {s_off[0]}, v{va}")
    else:
        a(f"v_add_u32 v{va}, s{s_off}, v{va}")
    a(f"s_mov_b32 s8, {WS_FLAG}")
    a(f"s_mov_b32 s{s_tmp}, 0")
    a.label(lp)
    for k in range(nl):
        a(f"buffer_load_dwordx2 {vr(vb + 2 * k, 2)}, v{va}, {sr(SRD3, 4)}, s8 offen offset:{512 * k} sc1")
    a("s_waitcnt vmcnt(0)")
    a("s_memrealtime s[12:13]")
    a("s_waitcnt lgkmcnt(0)")
    a("s_add_u32 s12, s12, 200")
    a("s_addc_u32 s13, s13, 0")
    lbad = a.newlabel("FW")
    for k in range(nl):
        m = min(64, n - 64 * k)
        if m < 64:
            a(f"s_mov_b64 exec, {(1 << m) - 1:#x}")
        a(f"v_cmp_gt_u64 vcc, {sr(S_NONCE, 2)}, {vr(vb + 2 * k, 2)}")
        a(f"s_cbranch_vccnz {lbad}")
        a(f"v_cmp_lt_u64 vcc, s[12:13], {vr(vb + 2 * k, 2)}")
        a(f"s_cbranch_vccnz {lbad}")
    a(f"s_branch {ld}")
    a.label(lbad)
    a("s_mov_b64 exec, -1")
    a("s_sleep 2")
    a(f"s_add_u32 s{s_tmp}, s{s_tmp}, 1")
    a(f"s_cmp_lt_u32 s{s_tmp}, 0x100000")
    a(f"s_cbranch_scc1 {lp}")
    a.label(ld)
    a("s_mov_b64 exec, -1")
    a.label(l)

def flag_issue(a, s_off, n, vb):
    l = only_sync_begin(a)
    a(f"v_lshlrev_b32 v{vb + 2}, 3, v1")
    a(f"v_add_u32 v{vb + 2}, s{s_off}, v{vb + 2}")
    a(f"s_mov_b32 s8, {WS_FLAG}")
    a(f"buffer_load_dwordx2 {vr(vb, 2)}, v{vb + 2}, {sr(SRD3, 4)}, s8 offen sc1")
    a.label(l)

def flag_eval(a, n, vb, lds_addr, s_cnt, inv=False):
    l = only_sync_begin(a)
    lbad, lok = a.newlabel("FE"), a.newlabel("FE")
    a("s_memrealtime s[12:13]")
    a("s_waitcnt vmcnt(0) lgkmcnt(0)")
    a("s_add_u32 s12, s12, 200")
    a("s_addc_u32 s13, s13, 0")
    a(f"s_add_u32 s{s_cnt}, s{s_cnt}, 1")
    a(f"s_cmp_ge_u32 s{s_cnt}, 0x80000")
    a(f"s_cbranch_scc1 {lok}")
    a(f"s_mov_b64 exec, {(1 << n) - 1:#x}")
    a(f"v_cmp_gt_u64 vcc, {sr(S_NONCE, 2)}, {vr(vb, 2)}")
    a(f"s_cbranch_vccnz {lbad}")
    a(f"v_cmp_lt_u64 vcc, s[12:13], {vr(vb, 2)}")
    a(f"s_cbranch_vccnz {lbad}")
    a.label(lok)
    a("s_mov_b64 exec, -1")
    if inv:
        a("buffer_inv sc1")
    a(f"v_mov_b32 v{vb}, 1")
    a(f"v_mov_b32 v{vb + 1}, {lds_addr}")
    a(f"ds_write_b32 v{vb + 1}, v{vb}")
    a("s_waitcnt vmcnt(0) lgkmcnt(0)")
    a.label(lbad)
    a("s_mov_b64 exec, -1")
    a.label(l)

def acquire_early(a):
    l = only_sync_begin(a)
    a("buffer_inv sc1")
    a.label(l)

def kernel_begin(a, name):
    a.raw(f".globl {name}")
    a.raw(".p2align 8")
    a.raw(f".type {name},@function")
    a.label(name)


def kernel_desc(name, nvgpr=256, nsgpr=102):
    acc = (nvgpr + 3) // 4 * 4
    return f""".p2align 6
.amdhsa_kernel {name}
  .amdhsa_next_free_vgpr {nvgpr}
  .amdhsa_next_free_sgpr {nsgpr}
  .amdhsa_accum_offset {acc}
  .amdhsa_group_segment_fixed_size 0
  .amdhsa_kernarg_size 112
  .amdhsa_user_sgpr_count 2
  .amdhsa_user_sgpr_kernarg_segment_ptr 1
  .amdhsa_system_sgpr_workgroup_id_x 1
.end_amdhsa_kernel
"""


def common_entry(a, ntasks, done_label):
    a(f"s_cmp_ge_u32 s2, {ntasks}")
    a(f"s_cbranch_scc1 {done_label}")
    load_ptrs(a)
    a("v_lshrrev_b32 v2, 6, v0")
    a("v_and_b32 v1, 63, v0")
    a("s_nop 0")
    a(f"v_readfirstlane_b32 s{S_WAVE}, v2")
    a("s_waitcnt lgkmcnt(0)")
    make_srd(a, SRD_DBG, P_DBG, 256)


def phase_kv(a, s_task, after_first_barrier=None, mid_hook=None, before_stores=None, hold=False, stage_hook=None):
    sC, sWK, sWV, sWS = SRD0, SRD1, SRD2, SRD3
    make_srd(a, sC, P_BC, 2048 * 512 * 2)
    make_srd(a, sWK, P_BWUK, 512 * 4096 * 2)
    make_srd(a, sWV, P_BWUV, 512 * 4096 * 2)
    make_srd(a, sWS, P_WS, WS_BYTES)
    sHead, sRb, sW, sT0, sT1, sStage, sBuf, sAoff, sWoff, sM0a, sM0w = [S_T + i for i in range(11)]
    a(f"s_and_b32 s{sHead}, s{s_task}, 31")
    a(f"s_lshr_b32 s{sRb}, s{s_task}, 5")
    sW = S_WAVE
    vA0, vA1, vW = 2, 3, 4
    vRA = 5
    vRW = 9
    vT = 11
    F0, F1 = 16, 40
    ACC = 128
    a(f"v_lshrrev_b32 v{vT}, 3, v1")
    a(f"s_lshl_b32 s{sT0}, s{sRb}, 8")
    a(f"s_lshl_b32 s{sT1}, s{sW}, 5")
    a(f"s_add_u32 s{sT0}, s{sT0}, s{sT1}")
    a(f"v_add_u32 v{vT}, s{sT0}, v{vT}")
    a(f"v_lshlrev_b32 v{vT}, 10, v{vT}")
    a(f"v_lshrrev_b32 v{vT + 1}, 4, v1")
    a(f"v_and_b32 v{vT + 2}, 7, v1")
    a(f"v_xor_b32 v{vT + 3}, v{vT + 2}, v{vT + 1}")
    a(f"v_lshl_add_u32 v{vA0}, v{vT + 3}, 4, v{vT}")
    a(f"v_xor_b32 v{vT + 3}, 4, v{vT + 3}")
    a(f"v_lshl_add_u32 v{vA1}, v{vT + 3}, 4, v{vT}")
    a(f"v_add_u32 v{vA1}, 8192, v{vA1}")
    a(f"v_and_b32 v{vT + 2}, 15, v1")
    a(f"v_lshlrev_b32 v{vT + 3}, 2, v{vT + 1}")
    a(f"v_xor_b32 v{vT + 2}, v{vT + 2}, v{vT + 3}")
    a(f"v_lshlrev_b32 v{vT + 2}, 4, v{vT + 2}")
    a(f"v_lshl_add_u32 v{vW}, v{vT + 1}, 13, v{vT + 2}")
    a(f"s_lshl_b32 s{sT0}, s{sHead}, 8")
    a(f"v_add_u32 v{vW}, s{sT0}, v{vW}")
    a(f"v_and_b32 v{vT}, 31, v1")
    a(f"s_and_b32 s{sT0}, s{sW}, 1")
    a(f"s_lshl_b32 s{sT0}, s{sT0}, 7")
    a(f"v_add_u32 v{vT + 1}, s{sT0}, v{vT}")
    a(f"v_lshlrev_b32 v{vT + 1}, 7, v{vT + 1}")
    a(f"v_bfe_u32 v{vT + 2}, v1, 1, 3")
    a(f"v_lshrrev_b32 v{vT + 3}, 5, v1")
    for t in range(4):
        a(f"v_add_u32 v{vT + 4}, {2 * t}, v{vT + 3}")
        a(f"v_xor_b32 v{vT + 4}, v{vT + 4}, v{vT + 2}")
        a(f"v_lshl_add_u32 v{vRA + t}, v{vT + 4}, 4, v{vT + 1}")
    a(f"v_bfe_u32 v{vT}, v1, 2, 2")
    a(f"v_lshrrev_b32 v{vT + 1}, 5, v1")
    a(f"v_lshl_add_u32 v{vT + 1}, v{vT + 1}, 3, v{vT}")
    a(f"v_lshlrev_b32 v{vT + 1}, 8, v{vT + 1}")
    a(f"v_bfe_u32 v{vT + 2}, v1, 4, 1")
    a(f"v_bfe_u32 v{vT + 3}, v1, 1, 1")
    a(f"v_lshl_add_u32 v{vT + 2}, v{vT + 2}, 1, v{vT + 3}")
    a(f"v_lshl_add_u32 v{vT + 1}, v{vT + 2}, 4, v{vT + 1}")
    a(f"v_and_b32 v{vT + 2}, 1, v1")
    a(f"v_lshl_add_u32 v{vT + 1}, v{vT + 2}, 3, v{vT + 1}")
    a(f"s_lshr_b32 s{sT0}, s{sW}, 2")
    a(f"s_lshl_b32 s{sT0}, s{sT0}, 14")
    a(f"s_add_u32 s{sT0}, s{sT0}, 32768")
    a(f"v_add_u32 v{vT + 1}, s{sT0}, v{vT + 1}")
    a(f"s_and_b32 s{sT0}, s{sW}, 2")
    for c in range(2):
        a(f"s_add_u32 s{sT1}, s{sT0}, {c}")
        a(f"v_xor_b32 v{vT + 2}, s{sT1}, v{vT}")
        a(f"v_lshl_add_u32 v{vRW + c}, v{vT + 2}, 6, v{vT + 1}")
    a(f"s_lshl_b32 s{sM0a}, s{sW}, 12")
    a(f"s_lshl_b32 s{sM0w}, s{sW}, 11")
    a(f"s_add_u32 s{sM0w}, s{sM0w}, 32768")
    a(f"s_lshl_b32 s{sWoff}, s{sW}, 16")
    a(f"s_mov_b32 s{sAoff}, 0")

    def issue_dma(bufreg_or_const):
        b = bufreg_or_const
        for j in range(4):
            a(f"s_add_u32 m0, s{sM0a}, {b + j * 1024}")
            if j >= 2:
                a(f"s_add_u32 s{sT0}, s{sAoff}, 16384")
                so = sT0
            else:
                a("s_nop 0")
                so = sAoff
            a(f"buffer_load_dwordx4 v{vA0 + (j & 1)}, {sr(sC, 4)}, s{so} offen lds")
        for j in range(2):
            a(f"s_add_u32 s{sT0}, s{sWoff}, {j * 32768}")
            a(f"s_add_u32 m0, s{sM0w}, {b + j * 1024}")
            a("s_nop 0")
            a(f"buffer_load_dwordx4 v{vW}, {sr(sWK, 4)}, s{sT0} offen lds")
            a(f"s_add_u32 m0, s{sM0w}, {b + 16384 + j * 1024}")
            a("s_nop 0")
            a(f"buffer_load_dwordx4 v{vW}, {sr(sWV, 4)}, s{sT0} offen lds")
        a(f"s_add_u32 s{sAoff}, s{sAoff}, 128")
        a(f"s_add_u32 s{sWoff}, s{sWoff}, 524288")

    def reads(F, t):
        for r in range(4):
            a(f"ds_read_b128 {vr(F + 4 * r, 4)}, v{vRA + t} offset:{r * 4096}")
        for c in range(2):
            for j in range(2):
                a(f"ds_read_b64_tr_b16 {vr(F + 16 + 4 * c + 2 * j, 2)}, v{vRW + c} offset:{(16 * t + 4 * j) * 256}")

    def toggle():
        for t in range(4):
            a(f"v_xor_b32 v{vRA + t}, 0x10000, v{vRA + t}")
        for c in range(2):
            a(f"v_xor_b32 v{vRW + c}, 0x10000, v{vRW + c}")

    def mfmas(F, kvar, first):
        for r in range(4):
            for c in range(2):
                d = ACC + 16 * (2 * r + c)
                A, B = (F + 16 + 4 * c, F + 4 * r) if kvar else (F + 4 * r, F + 16 + 4 * c)
                mfma(a, d, A, B, "0" if first else None)

    if not FUSED:
        stamp(a, 0)
        stamp(a, 5, True)
    issue_dma(0)
    issue_dma(65536)
    a("s_waitcnt vmcnt(8)")
    a("s_barrier")
    if not FUSED: stamp(a, 1)
    stamp(a, 2, sset="1")
    rstamp(a, 2)
    if after_first_barrier:
        after_first_barrier()
    reads(F0, 0)
    lV, lEnd = a.newlabel("KV_V"), a.newlabel("KV_END")
    a(f"s_cmp_ge_u32 s{sW}, 4")
    a(f"s_cbranch_scc1 {lV}")
    NST = 8
    for kvar in (True, False):
        if not kvar:
            a.label(lV)
        for s in range(NST):
            buf = (s & 1) * 65536
            reads(F1, 1)
            a("s_waitcnt lgkmcnt(8)")
            mfmas(F0, kvar, s == 0)
            reads(F0, 2)
            a("s_waitcnt lgkmcnt(8)")
            mfmas(F1, kvar, False)
            reads(F1, 3)
            a("s_waitcnt lgkmcnt(8)")
            mfmas(F0, kvar, False)
            if s == 5 and mid_hook:
                stamp(a, 3, sset="1")
                rstamp(a, 3)
                mid_hook()
                rstamp(a, 4)
                stamp(a, 4, sset="1")
                stamp(a, 1, sset="2")
            if s < NST - 1:
                a("s_waitcnt vmcnt(0) lgkmcnt(0)")
                a("s_barrier")
                if s + 2 < NST:
                    issue_dma(buf)
                if stage_hook:
                    stage_hook(s)
                toggle()
                reads(F0, 0)
            else:
                a("s_waitcnt lgkmcnt(0)")
            mfmas(F1, kvar, False)
        if kvar:
            a(f"s_branch {lEnd}")
    a.label(lEnd)
    stamp(a, 2, sset="2")
    if not FUSED: stamp(a, 2)
    a(f"s_lshl_b32 s{sT0}, s{sHead}, 6")
    a(f"s_lshl_b32 s{sT1}, s{sRb}, 3")
    a(f"s_add_u32 s{sT0}, s{sT0}, s{sT1}")
    a(f"s_and_b32 s{sT1}, s{sW}, 1")
    a(f"s_lshl_b32 s{sT1}, s{sT1}, 2")
    a(f"s_add_u32 s{sT0}, s{sT0}, s{sT1}")
    a(f"s_lshl_b32 s{sT0}, s{sT0}, 3")
    a(f"s_and_b32 s{sT1}, s{sW}, 2")
    a(f"s_lshl_b32 s{sT1}, s{sT1}, 1")
    a(f"s_add_u32 s{sT0}, s{sT0}, s{sT1}")
    a(f"s_lshl_b32 s{sT0}, s{sT0}, 10")
    a(f"s_lshr_b32 s{sT1}, s{sW}, 2")
    a(f"s_lshl_b32 s{sT1}, s{sT1}, 24")
    a(f"s_add_u32 s{sT0}, s{sT0}, s{sT1}")
    a(f"s_mov_b32 s3, s{sT0}")
    if before_stores:
        a("s_barrier")
        before_stores()
    stamp(a, 3, sset="2")
    if hold:
        a("s_nop 7")
        a("s_nop 7")
        for tile in range(7, -1, -1):
            d = ACC + 16 * tile
            for i in range(7, -1, -1):
                a(f"v_cvt_pk_bf16_f32 v{192 + 8 * tile + i}, v{d + 2 * i}, v{d + 2 * i + 1}")
        return
    vT = 127
    sT1 = 12
    a(f"v_lshlrev_b32 v{vT}, 4, v1")
    a("s_nop 7")
    a("s_nop 7")
    for r in range(4):
        a(f"s_add_u32 s{sT1}, s3, {r * 8192}")
        for c in range(2):
            d = ACC + 16 * (2 * r + c)
            o = d
            for i in range(8):
                a(f"v_cvt_pk_bf16_f32 v{o + i}, v{d + 2 * i}, v{d + 2 * i + 1}")
            a(f"buffer_store_dwordx4 {vr(o, 4)}, v{vT}, {sr(sWS, 4)}, s{sT1} offen offset:{(2 * c) * 1024}{st_flags()}")
            a(f"buffer_store_dwordx4 {vr(o + 4, 4)}, v{vT}, {sr(sWS, 4)}, s{sT1} offen offset:{(2 * c + 1) * 1024}{st_flags()}")
    if not FUSED:
        stamp(a, 3)
        a("s_waitcnt vmcnt(0)")
        stamp(a, 4)
        stamp(a, 6, True)
        stamp_flush(a, 7, sWS)


def build(kernels):
    a = Asm()
    hdr = []
    for (name, grid, block, lds, fn) in kernels:
        hdr.append(f"; @launch kernel={name} grid=({grid},1,1) block=({block},1,1) lds={lds}")
    a.raw('.amdgcn_target "amdgcn-amd-amdhsa--gfx950"')
    a.raw(".text")
    seen = []
    for (name, grid, block, lds, fn) in kernels:
        if name in seen:
            continue
        seen.append(name)
        kernel_begin(a, name)
        done = a.newlabel("DONE")
        common_entry(a, grid, done)
        fn(a)
        a.label(done)
        a("s_endpgm")
    a.raw('.section .rodata,"a"')
    for name in seen:
        a.raw(kernel_desc(name))
    return "\n".join(hdr) + "\n" + a.text()


if __name__ == "__main__":
    import phases, gen
    if len(sys.argv) > 2 and sys.argv[2] == "stamps":
        gen.STAMPS = True
    gen.FUSED = getattr(phases, "FUSED", False)
    txt = phases.make()
    out = sys.argv[1] if len(sys.argv) > 1 else f"cdna_kernels/{NAME}.s"
    ref = open(f"cdna_kernels/{NAME}.s.ref").read().split("; Override launch")[0]
    open(out, "w").write(ref + txt)
    print("wrote", out, len(txt), "bytes")
```
